```python
import torch

def _softmax(x, axis=-1):
    return torch.softmax(x, dim=axis)
def _gelu(x):
    return torch.nn.functional.gelu(x, approximate="tanh")
def _silu(x):
    return torch.nn.functional.silu(x)
def _sigmoid(x):
    return torch.sigmoid(x)
def _layernorm(x, axis=-1, eps=1e-5):
    m = x.mean(dim=axis, keepdim=True)
    v = x.var(dim=axis, keepdim=True, unbiased=False)
    return (x - m) / torch.sqrt(v + eps)
def _scatter_add(tgt, idx, src, axis=0):
    return tgt.clone().index_add_(axis, idx, src)
def _segment_sum(src, seg, n):
    out = torch.zeros((n,) + src.shape[1:], dtype=src.dtype)
    return out.index_add_(0, seg, src)
def _pad(x, pw):
    flat = tuple(v for pair in reversed(pw) for v in pair)
    return torch.nn.functional.pad(x, flat)

kernel_name = 'standalone__mha_block_cached__near_ridge'

def setup_inputs():

    _w = (lambda a: (lambda t: t.to(torch.bfloat16) if t.is_floating_point() else t)(torch.as_tensor(a)))
    B, Sq, D = 8, 128, 640
    H, Sk, Dh = 32, 1024, 128
    return {
        "x": _w((lambda *s: torch.randn(*s, dtype=torch.bfloat16) * 0.8)(B, Sq, D)),
        "k_cache": _w((lambda *s: torch.randn(*s, dtype=torch.bfloat16) * 0.8)(B, H, Sk, Dh)),
        "v_cache": _w((lambda *s: torch.randn(*s, dtype=torch.bfloat16) * 0.05)(B, H, Sk, Dh)),
        "wq": _w((lambda *s: torch.randn(*s, dtype=torch.bfloat16) * 0.8)(D, H * Dh) * (D ** -0.5)),
        "wo": _w((lambda *s: torch.randn(*s, dtype=torch.bfloat16) * 0.05)(H * Dh, D) * ((H * Dh) ** -0.5)),
    }

def reference(x, k_cache, v_cache, wq, wo):
    B, Sq, D = x.shape
    H, Dh = 32, 128
    q = (lambda x, *d: x.permute(*d))((x @ wq).reshape(B, Sq, H, Dh), 0, 2, 1, 3)
    scores = torch.einsum("bhqd,bhkd->bhqk", q, k_cache) * (Dh ** -0.5)
    p = _softmax(scores, axis=-1)
    o = torch.einsum("bhqk,bhkd->bhqd", p, v_cache)
    return (lambda x, *d: x.permute(*d))(o, 0, 2, 1, 3).reshape(B, Sq, H * Dh) @ wo
```

```python
import re

TRANS = ("v_exp_f32", "v_log_f32", "v_rcp_f32", "v_rsq_f32", "v_sqrt_f32", "v_sin_f32", "v_cos_f32")


def regs_of(tok):
    tok = tok.strip()
    if tok.startswith("-"):
        tok = tok[1:]
    m = re.fullmatch(r"abs\((.*)\)", tok)
    if m:
        tok = m.group(1)
    m = re.fullmatch(r"([vsa])(\d+)", tok)
    if m:
        return [tok]
    m = re.fullmatch(r"([vsa])\[(\d+):(\d+)\]", tok)
    if m:
        return [f"{m.group(1)}{i}" for i in range(int(m.group(2)), int(m.group(3)) + 1)]
    if tok in ("vcc", "exec", "m0", "scc"):
        return [tok]
    if tok in ("vcc_lo", "vcc_hi"):
        return ["vcc"]
    if tok in ("exec_lo", "exec_hi"):
        return ["exec"]
    return []


class Inst:
    def __init__(self, text):
        self.text = text
        self.nops = 0
        self.is_label = text.rstrip().endswith(":")
        self.kind = "other"
        self.w = set()
        self.r = set()
        self.rA = set()
        self.rC = set()
        self.states = 1
        self.store_data = set()
        if self.is_label or text.startswith(";") or text.startswith("."):
            self.kind = "label"
            self.states = 0
            return
        body = text.split(";")[0].strip()
        parts = body.split(None, 1)
        mn = parts[0]
        self.mn = mn
        rest = parts[1] if len(parts) > 1 else ""
        ops = [o.strip() for o in re.split(r",(?![^\[]*\])", rest)] if rest else []
        mods = []
        if ops:
            lp = ops[-1].split()
            ops[-1] = lp[0]
            mods = lp[1:]
        self.mods = mods
        if mn == "s_nop":
            self.kind = "nop"
            self.states = int(ops[0], 0) + 1
        elif mn.startswith("v_mfma"):
            self.kind = "mfma8" if "32x32" in mn else "mfma4"
            self.w = set(regs_of(ops[0]))
            self.rA = set(regs_of(ops[1])) | set(regs_of(ops[2]))
            self.rC = set(regs_of(ops[3]))
            self.r = self.rA | self.rC
        elif mn.startswith("v_permlane"):
            self.kind = "permlane"
            self.w = set(regs_of(ops[0])) | set(regs_of(ops[1]))
            self.r = set(self.w)
        elif mn.startswith("v_readfirstlane") or mn.startswith("v_readlane"):
            self.kind = "readlane"
            self.w = set(regs_of(ops[0]))
            for o in ops[1:]:
                self.r |= set(regs_of(o))
        elif mn.startswith("v_"):
            base = mn.replace("_e32", "").replace("_e64", "")
            self.kind = "trans" if base in TRANS else "valu"
            self.w = set(regs_of(ops[0]))
            srcs = ops[1:]
            if base.startswith("v_add_co") or base.startswith("v_addc_co") or base.startswith("v_sub_co"):
                self.w |= set(regs_of(ops[1]))
                srcs = ops[2:]
            for o in srcs:
                self.r |= set(regs_of(o))
            if base.startswith("v_fmac") or base.startswith("v_pk_fmac"):
                self.r |= self.w
            if base.startswith("v_cmpx"):
                self.w |= {"exec"}
        elif mn.startswith("ds_read") or mn.startswith("ds_bpermute") or mn.startswith("ds_swizzle"):
            self.kind = "ds"
            self.w = set(regs_of(ops[0]))
            for o in ops[1:]:
                self.r |= set(regs_of(o))
        elif mn.startswith("ds_write") or mn.startswith("ds_add"):
            self.kind = "ds"
            for o in ops:
                self.r |= set(regs_of(o))
        elif mn.startswith("buffer_load") or mn.startswith("global_load"):
            self.kind = "vmem"
            if "lds" in mods:
                self.kind = "vmem_lds"
                for o in ops:
                    self.r |= set(regs_of(o))
                self.r |= {"m0"}
            else:
                self.w = set(regs_of(ops[0]))
                for o in ops[1:]:
                    self.r |= set(regs_of(o))
        elif mn.startswith("buffer_store") or mn.startswith("global_store"):
            self.kind = "vmem"
            for o in ops:
                self.r |= set(regs_of(o))
            if "x4" in mn or "x3" in mn:
                d = ops[0] if mn.startswith("buffer") else ops[1]
                self.store_data = set(regs_of(d))
        elif mn.startswith("buffer_atomic") or mn.startswith("global_atomic"):
            self.kind = "vmem"
            for o in ops:
                self.r |= set(regs_of(o))
            if "sc0" in mods:
                self.w = set(regs_of(ops[0]))
        elif mn.startswith("buffer_") :
            self.kind = "vmem"
        elif mn.startswith("s_"):
            self.kind = "salu"
            nodest = ("s_cmp", "s_waitcnt", "s_barrier", "s_branch", "s_cbranch", "s_endpgm", "s_setprio",
                      "s_sleep", "s_bitcmp")
            if mn.startswith(nodest):
                for o in ops:
                    self.r |= set(regs_of(o))
            else:
                self.w = set(regs_of(ops[0]))
                for o in ops[1:]:
                    self.r |= set(regs_of(o))
                if "saveexec" in mn:
                    self.w |= {"exec"}
        else:
            raise ValueError("unknown instruction " + text)


def is_valu(k):
    return k in ("valu", "trans", "permlane", "readlane")


def need(p, c):
    n = 0
    pk, ck = p.kind, c.kind
    pw_v = {x for x in p.w if x[0] in "va" and x != "vcc"}
    pw_s = {x for x in p.w if x[0] == "s" or x == "vcc"}
    if is_valu(pk):
        if ck in ("mfma8", "mfma4") and (pw_v & c.r):
            n = max(n, 2)
        if ck == "permlane" and (pw_v & c.r):
            n = max(n, 2)
        if ck == "readlane" and (pw_v & c.r):
            n = max(n, 1)
        if pk == "trans" and ck != "trans" and (pw_v & (c.r | c.w)) and (is_valu(ck)):
            n = max(n, 1)
        if pw_s:
            if ck in ("vmem", "vmem_lds") and (pw_s & c.r):
                n = max(n, 5)
            if is_valu(ck) and (pw_s & c.r):
                n = max(n, 4 if ck == "readlane" else 2)
            if ck == "salu" and (pw_s & c.r):
                n = max(n, 2)
        if "exec" in p.w and ck in ("mfma8", "mfma4", "readlane", "permlane"):
            n = max(n, 4)
    if pk in ("mfma8", "mfma4"):
        big = 12 if pk == "mfma8" else 8
        if ck in ("mfma8", "mfma4"):
            if p.w & c.rA:
                n = max(n, big)
            if p.w & c.rC:
                if not (p.w == c.rC and pk == ck):
                    n = max(n, 10 if pk == "mfma8" else 6)
            elif p.w & c.w:
                n = max(n, big)
        else:
            if p.w & (c.r | c.w):
                n = max(n, big)
        if is_valu(ck) and (p.rC & c.w):
            n = max(n, 7 if pk == "mfma8" else 3)
    if pk == "salu" and "m0" in p.w and ck == "vmem_lds":
        n = max(n, 1)
    if p.store_data and (p.store_data & c.w):
        n = max(n, 2)
    return n


class Prog:
    def __init__(self):
        self.blocks = {}
        self.cur = None

    def block(self, name):
        self.cur = []
        self.blocks[name] = self.cur
        return self.cur

    def __call__(self, text):
        for line in text.strip().split("\n"):
            line = line.strip()
            if not line:
                continue
            self.cur.append(Inst(line))

    def fix_hazards(self, trace_names):
        trace = []
        for n in trace_names:
            trace += self.blocks[n]
        for i, c in enumerate(trace):
            if c.kind in ("label", "nop"):
                continue
            dist = c.nops
            req = 0
            j = i - 1
            while j >= 0 and dist < 16:
                p = trace[j]
                if p.kind != "label":
                    nd = need(p, c)
                    if nd > dist:
                        req = max(req, nd - dist)
                    dist += p.states + p.nops
                j -= 1
            if req:
                c.nops += req

    def emit(self, names):
        out = []
        for n in names:
            for ins in self.blocks[n]:
                k = ins.nops
                while k > 0:
                    t = min(k, 16)
                    out.append(f"    s_nop {t - 1}")
                    k -= t
                if ins.kind == "label":
                    out.append(ins.text)
                else:
                    out.append("    " + ins.text)
        return "\n".join(out) + "\n"
```

```python
import sys, os
sys.path.insert(0, os.path.dirname(__file__))
from dsl import Prog

NAME = "standalone__mha_block_cached__near_ridge"
import math
SCALE_C = (128 ** -0.5) * math.log2(math.e)


def f32hex(x):
    import struct
    return "0x%08x" % struct.unpack("<I", struct.pack("<f", x))[0]


def vr(a, n):
    return f"v[{a}:{a + n - 1}]" if n > 1 else f"v{a}"


def interleave(mf, va):
    out = []
    n = len(mf)
    k = 0
    for i, m in enumerate(mf):
        out.append(m)
        tgt = (len(va) * (i + 1)) // n
        while k < tgt:
            out.append(va[k]); k += 1
    return out


WBASE = 131072
NT = done = None


STAMP = "--stamp" in sys.argv
def opt(name):
    for a in sys.argv:
        if a.startswith("--" + name + "="):
            return " " + a.split("=", 1)[1].replace("+", " ")
    return ""
K2A, K2B, OST, XW = opt("k2a"), opt("k2b"), opt("ost"), opt("xw")


def gen_k1(P, nt=""):
    sW, sH, sB, sBH, sJ, sSlot, sT, sXo, sWo, sOo, sC, sNC = 40, 41, 42, 43, 44, 45, 46, 47, 48, 49, 50, 51
    P.block("k1_pro")
    P(f"""
attn_kernel:
    s_cmp_ge_u32 s2, 256
    s_cbranch_scc1 K1_END
    s_load_dwordx8 s[4:11], s[0:1], 0
    s_load_dwordx4 s[16:19], s[0:1], 48
    v_lshrrev_b32 v1, 6, v0
    v_and_b32 v255, 63, v0
    v_readfirstlane_b32 s{sW}, v1
    s_and_b32 s{sH}, s2, 7
    s_lshl_b32 s{sH}, s{sH}, 2
    s_lshr_b32 s{sT}, s2, 3
    s_and_b32 s{sT}, s{sT}, 3
    s_add_u32 s{sH}, s{sH}, s{sT}
    s_lshr_b32 s{sB}, s2, 5
    s_lshl_b32 s{sBH}, s{sB}, 5
    s_add_u32 s{sBH}, s{sBH}, s{sH}
    s_waitcnt lgkmcnt(0)
    s_mov_b32 s20, s4
    s_and_b32 s21, s5, 0xffff
    s_mov_b32 s22, 1310720
    s_mov_b32 s23, 0x00020000
    s_mov_b32 s24, s10
    s_and_b32 s25, s11, 0xffff
    s_mov_b32 s26, 5242880
    s_mov_b32 s27, 0x00020000
    s_lshl_b32 s{sT}, s{sBH}, 18
    s_add_u32 s28, s6, s{sT}
    s_addc_u32 s29, s7, 0
    s_and_b32 s29, s29, 0xffff
    s_mov_b32 s30, 262144
    s_mov_b32 s31, 0x00020000
    s_add_u32 s32, s8, s{sT}
    s_addc_u32 s33, s9, 0
    s_and_b32 s33, s33, 0xffff
    s_mov_b32 s34, 262144
    s_mov_b32 s35, 0x00020000
    s_mov_b32 s36, s18
    s_and_b32 s37, s19, 0xffff
    s_mov_b32 s38, {33554432 if STAMP else 8388608}
    s_mov_b32 s39, 0x00020000
    s_lshl_b32 s58, s2, 11
    s_lshl_b32 s59, s{sW}, 8
    s_add_u32 s58, s58, s59
    s_add_u32 s58, s58, 16777216
    s_memtime s[92:93]
    s_memrealtime s[94:95]
    s_cmp_ge_u32 s{sW}, 4
    s_cbranch_scc1 K1_LOADER
""")

    def stamp(slot, sreg=None):
        if not STAMP:
            return False
        P("s_memtime s[60:61]")
        P("s_waitcnt lgkmcnt(0)")
        P("v_mov_b32 v222, s60")
        P("v_mov_b32 v223, s61")
        P("v_mov_b32 v221, 0")
        if sreg is None:
            P(f"buffer_store_dwordx2 v[222:223], v221, s[36:39], s58 offen offset:{slot * 8}")
        else:
            P(f"s_lshl_b32 s59, s{sreg}, 3")
            P(f"s_add_u32 s59, s59, s58")
            P(f"buffer_store_dwordx2 v[222:223], v221, s[36:39], s59 offen offset:{slot * 8}")
        return True

    vL = 255
    vX, vWg, vWw = 224, 225, 226
    vWr = [227, 228, 229, 230]
    vKb = 231
    vVb = [232, 233, 234, 235]
    vK = list(range(236, 244))
    vV = [244, 245, 246, 247]
    vM, vLs, vAl, vNMC, vT0, vT1, vT2 = 248, 249, 250, 251, 252, 253, 254
    vOo = 224
    t0, t1, t2, t3 = 208, 209, 210, 211

    P.block("k1_setup")
    P(f"""
    v_and_b32 v{t0}, 31, v{vL}
    v_lshrrev_b32 v{t1}, 5, v{vL}
    v_mul_u32_u24 v{vX}, 1280, v{t0}
    v_lshl_add_u32 v{vX}, v{t1}, 4, v{vX}
    s_lshl_b32 s{sXo}, s{sB}, 7
    s_lshl_b32 s{sT}, s{sW}, 5
    s_add_u32 s{sXo}, s{sXo}, s{sT}
    s_mul_i32 s{sXo}, s{sXo}, 1280
    v_lshrrev_b32 v{t2}, 4, v{vL}
    v_and_b32 v{t3}, 15, v{vL}
    v_lshlrev_b32 v{vWg}, 13, v{t2}
    v_lshl_add_u32 v{vWg}, v{t3}, 4, v{vWg}
    s_lshl_b32 s{sWo}, s{sH}, 8
    s_lshl_b32 s{sT}, s{sW}, 17
    s_add_u32 s{sWo}, s{sWo}, s{sT}
""")
    P(f"""
    v_lshlrev_b32 v{vT0}, 2, v{t2}
    v_xor_b32 v{vT0}, v{vT0}, v{t3}
    v_lshlrev_b32 v{vT0}, 4, v{vT0}
    v_lshl_add_u32 v{vT0}, v{t2}, 8, v{vT0}
    s_lshl_b32 s{sT}, s{sW}, 12
    s_add_u32 s{sT}, s{sT}, {WBASE}
    v_add_u32 v{vWw}, s{sT}, v{vT0}
""")
    P(f"""
    v_xor_b32 v{vT0}, v{t1}, v{t3}
    v_lshlrev_b32 v{vT0}, 4, v{vT0}
    v_lshl_add_u32 v{vKb}, v{t0}, 8, v{vT0}
""")
    P(f"""
    v_bfe_u32 v{vT0}, v{vL}, 4, 1
    v_lshlrev_b32 v{vT0}, 5, v{vT0}
    v_and_b32 v{vT1}, 1, v{vL}
    v_lshl_add_u32 v{vT0}, v{vT1}, 4, v{vT0}
    v_bfe_u32 v{vT1}, v{vL}, 1, 1
    v_lshl_add_u32 v{vT0}, v{vT1}, 3, v{vT0}
    v_bfe_u32 v{vT1}, v{vL}, 2, 2
    v_lshl_add_u32 v{vT0}, v{vT1}, 8, v{vT0}
""")
    for t in range(4):
        P(f"""
    v_xor_b32 v{vT2}, {t}, v{vT1}
    v_lshl_add_u32 v{vT2}, v{vT2}, 6, v{vT0}
    v_lshl_add_u32 v{vWr[t]}, v{t1}, 11, v{vT2}
    v_add_u32 v{vWr[t]}, {WBASE}, v{vWr[t]}
    v_lshl_add_u32 v{vVb[t]}, v{t1}, 10, v{vT2}
    v_add_u32 v{vVb[t]}, 16384, v{vVb[t]}
""")
    P(f"""
    s_mov_b32 s{sC}, {f32hex(SCALE_C)}
    s_mov_b32 s{sNC}, {f32hex(-SCALE_C)}
""")

    P.block("k1_phA")
    vm = []

    def issueW(c):
        base = 64 + 32 * (c % 4)
        for i in range(4):
            P(f"s_add_u32 s{sT}, s{sWo}, {c * 524288 + i * 32768}")
            P(f"buffer_load_dwordx4 {vr(base + 4 * i, 4)}, v{vWg}, s[24:27], s{sT} offen{XW}")
            vm.append(("W", c))

    def issueX(c):
        base = 64 + 32 * (c % 4) + 16
        for j in range(4):
            P(f"buffer_load_dwordx4 {vr(base + 4 * j, 4)}, v{vX}, s[20:23], s{sXo} offen offset:{128 * c + 32 * j}{XW}")
            vm.append(("X", c))

    def waitvm(tag):
        idx = max(i for i, t in enumerate(vm) if t == tag)
        P(f"s_waitcnt vmcnt({len(vm) - 1 - idx})")

    for c in range(4):
        issueW(c); issueX(c)
    for i in range(64):
        P(f"v_mov_b32 v{i}, 0")

    def trW(c, s):
        fb = 192 + 16 * (s % 2)
        for t in range(4):
            for j2 in range(2):
                P(f"ds_read_b64_tr_b16 {vr(fb + 4 * t + 2 * j2, 2)}, v{vWr[t]} offset:{(c % 2) * 16384 + 4096 * s + 1024 * j2}")

    for c in range(10):
        base = 64 + 32 * (c % 4)
        waitvm(("W", c))
        for i in range(4):
            P(f"ds_write_b128 v{vWw}, {vr(base + 4 * i, 4)} offset:{(c % 2) * 16384 + 1024 * i}")
        P("s_waitcnt lgkmcnt(0)")
        P("s_barrier")
        if c in (0, 5) and stamp(1 if c == 0 else 2):
            vm.append(("S", c))
        if c + 4 < 10:
            issueW(c + 4)
        trW(c, 0)
        waitvm(("X", c))
        for s in range(4):
            if s < 3:
                P("s_waitcnt lgkmcnt(4)")
                trW(c, s + 1)
                P("s_waitcnt lgkmcnt(8)")
            else:
                P("s_waitcnt lgkmcnt(0)")
            fb = 192 + 16 * (s % 2)
            for t in range(4):
                P(f"v_mfma_f32_32x32x16_bf16 {vr(16 * t, 16)}, {vr(fb + 4 * t, 4)}, {vr(base + 16 + 4 * s, 4)}, {vr(16 * t, 16)}")
        if c + 4 < 10:
            issueX(c + 4)

    for t in range(4):
        for u in range(2):
            for j in range(4):
                a = 16 * t + 8 * u + 2 * j
                P(f"v_cvt_pk_bf16_f32 v{64 + 4 * (2 * t + u) + j}, v{a}, v{a + 1}")
    for i in range(64):
        P(f"v_mov_b32 v{i}, 0")
    P(f"""
    v_mov_b32 v{vM}, 0xff800000
    v_mov_b32 v{vLs}, 0
    s_mov_b32 s{sJ}, 0
""")
    stamp(3)

    P.block("k1_loop")
    P("K1_LOOP:")
    P("s_barrier")
    stamp(8, sJ)
    P(f"""
    s_and_b32 s{sSlot}, s{sJ}, 3
    s_lshl_b32 s{sSlot}, s{sSlot}, 15
    v_add_u32 v{vK[0]}, s{sSlot}, v{vKb}
""")
    for s in range(1, 8):
        P(f"v_xor_b32 v{vK[s]}, {s << 5}, v{vK[0]}")
    for t in range(4):
        P(f"v_add_u32 v{vV[t]}, s{sSlot}, v{vVb[t]}")
    KF0, KF1 = 144, 176
    S0, S1 = 96, 112
    PP = 128
    for s in range(8):
        P(f"ds_read_b128 {vr(KF0 + 4 * s, 4)}, v{vK[s]}")
    for s in range(8):
        P(f"ds_read_b128 {vr(KF1 + 4 * s, 4)}, v{vK[s]} offset:8192")
        P("s_waitcnt lgkmcnt(8)")
        c = "0" if s == 0 else vr(S0, 16)
        P(f"v_mfma_f32_32x32x16_bf16 {vr(S0, 16)}, {vr(KF0 + 4 * s, 4)}, {vr(64 + 4 * s, 4)}, {c}")
    mx0 = []
    mx0.append(f"v_max3_f32 v{vT0}, v{S0}, v{S0 + 1}, v{S0 + 2}")
    mx0.append(f"v_max3_f32 v{vT1}, v{S0 + 3}, v{S0 + 4}, v{S0 + 5}")
    for k in range(5):
        tg = vT0 if k % 2 == 0 else vT1
        mx0.append(f"v_max3_f32 v{tg}, v{tg}, v{S0 + 6 + 2 * k}, v{S0 + 7 + 2 * k}")
    for s in range(8):
        P(f"s_waitcnt lgkmcnt({7 - s})")
        c = "0" if s == 0 else vr(S1, 16)
        P(f"v_mfma_f32_32x32x16_bf16 {vr(S1, 16)}, {vr(KF1 + 4 * s, 4)}, {vr(64 + 4 * s, 4)}, {c}")
        if s >= 3:
            k = s - 3
            for q in mx0[(k * 7) // 5:((k + 1) * 7) // 5]:
                P(q)

    def trV(ks, fb):
        for t in range(4):
            for j2 in range(2):
                P(f"ds_read_b64_tr_b16 {vr(fb + 4 * t + 2 * j2, 2)}, v{vV[t]} offset:{4096 * ks + 2048 * j2}")

    trV(0, 144)
    for k in range(8):
        tg = vT0 if k % 2 == 0 else vT1
        P(f"v_max3_f32 v{tg}, v{tg}, v{S1 + 2 * k}, v{S1 + 2 * k + 1}")
    P("s_waitcnt lgkmcnt(4)")
    trV(1, 160)
    P(f"""
    v_max3_f32 v{vT0}, v{vT0}, v{vT1}, v{vM}
    v_mov_b32 v{vT1}, v{vT0}
    v_permlane32_swap_b32 v{vT0}, v{vT1}
    v_max_f32 v{vT0}, v{vT0}, v{vT1}
    v_sub_f32 v{vT1}, v{vM}, v{vT0}
    v_mul_f32 v{vT1}, s{sC}, v{vT1}
    v_exp_f32 v{vAl}, v{vT1}
    v_mov_b32 v{vM}, v{vT0}
    v_mul_f32 v{vNMC}, s{sNC}, v{vT0}
""")

    def expblk(S, pbase, first):
        ops = []
        for i in range(16):
            ops.append(f"v_fma_f32 v{S + i}, v{S + i}, s{sC}, v{vNMC}")
            ops.append(f"v_exp_f32 v{S + i}, v{S + i}")
            if i >= 1:
                j = i - 1
                tg = vT0 if j % 2 == 0 else vT1
                if first and j < 2:
                    ops.append(f"v_mov_b32 v{tg}, v{S + j}")
                else:
                    ops.append(f"v_add_f32 v{tg}, v{tg}, v{S + j}")
                if j % 2 == 1:
                    ops.append(f"v_cvt_pk_bf16_f32 v{pbase + j // 2}, v{S + j - 1}, v{S + j}")
        ops.append(f"v_add_f32 v{vT1}, v{vT1}, v{S + 15}")
        ops.append(f"v_cvt_pk_bf16_f32 v{pbase + 7}, v{S + 14}, v{S + 15}")
        return ops

    for q in expblk(S0, PP, True):
        P(q)
    for i in range(64):
        P(f"v_mul_f32 v{i}, v{vAl}, v{i}")
    P("s_waitcnt lgkmcnt(0)")
    trV(2, 176)

    def pv(ks, fb):
        return [f"v_mfma_f32_32x32x16_bf16 {vr(16 * t, 16)}, {vr(fb + 4 * t, 4)}, {vr(PP + 4 * ks, 4)}, {vr(16 * t, 16)}"
                for t in range(4)]

    e1 = expblk(S1, PP + 8, False)
    seq = interleave(pv(0, 144) + pv(1, 160), e1)
    h = len(seq) // 2
    for q in seq[:h]:
        P(q)
    P("s_waitcnt lgkmcnt(4)")
    trV(3, 192)
    for q in seq[h:]:
        P(q)
    P("s_waitcnt lgkmcnt(0)")
    for q in pv(2, 176) + pv(3, 192):
        P(q)
    P(f"""
    v_add_f32 v{vT0}, v{vT0}, v{vT1}
    v_fma_f32 v{vLs}, v{vLs}, v{vAl}, v{vT0}
    s_add_u32 s{sJ}, s{sJ}, 1
    s_cmp_lt_u32 s{sJ}, 16
    s_cbranch_scc1 K1_LOOP
""")

    P.block("k1_epi")
    stamp(4)
    P(f"""
    v_mov_b32 v{vT1}, v{vLs}
    v_permlane32_swap_b32 v{vLs}, v{vT1}
    v_add_f32 v{vLs}, v{vLs}, v{vT1}
    v_rcp_f32 v{vAl}, v{vLs}
    v_bfe_u32 v{vT0}, v{vL}, 4, 1
    v_lshlrev_b32 v{vT0}, 17, v{vT0}
    v_lshrrev_b32 v{vT1}, 5, v{vL}
    v_lshl_add_u32 v{vT0}, v{vT1}, 8, v{vT0}
    v_and_b32 v{vT1}, 15, v{vL}
    v_lshl_add_u32 v{vOo}, v{vT1}, 4, v{vT0}
    s_lshl_b32 s{sOo}, s{sB}, 3
    s_lshl_b32 s{sT}, s{sW}, 1
    s_add_u32 s{sOo}, s{sOo}, s{sT}
    s_lshl_b32 s{sOo}, s{sOo}, 17
    s_lshl_b32 s{sT}, s{sH}, 12
    s_add_u32 s{sOo}, s{sOo}, s{sT}
""")
    for i in range(64):
        P(f"v_mul_f32 v{i}, v{vAl}, v{i}")
    for t in range(4):
        for u in range(2):
            d = 64 + 4 * (2 * t + u)
            for j in range(4):
                a = 16 * t + 8 * u + 2 * j
                P(f"v_cvt_pk_bf16_f32 v{d + j}, v{a}, v{a + 1}")
            P(f"buffer_store_dwordx4 {vr(d, 4)}, v{vOo}, s[36:39], s{sOo} offen offset:{t * 1024 + u * 512}{OST}")
    if STAMP:
        P("s_waitcnt vmcnt(0)")
        stamp(5)
        P("s_waitcnt lgkmcnt(0)")
        P("v_mov_b32 v222, s92")
        P("v_mov_b32 v223, s93")
        P("buffer_store_dwordx2 v[222:223], v221, s[36:39], s58 offen")
        P("s_memrealtime s[96:97]")
        P("s_waitcnt lgkmcnt(0)")
        P("v_mov_b32 v222, s94")
        P("v_mov_b32 v223, s95")
        P("buffer_store_dwordx2 v[222:223], v221, s[36:39], s58 offen offset:48")
        P("v_mov_b32 v224, s96")
        P("v_mov_b32 v225, s97")
        P("buffer_store_dwordx2 v[224:225], v221, s[36:39], s58 offen offset:56")
    P("s_endpgm")

    P.block("k1_loader")
    sLW, sM = 44, 45
    P(f"""
K1_LOADER:
    s_sub_u32 s{sLW}, s{sW}, 4
    v_lshrrev_b32 v1, 4, v255
    v_and_b32 v2, 15, v255
    s_lshl_b32 s{sT}, s{sLW}, 12
    v_lshlrev_b32 v3, 8, v1
    v_add_u32 v3, s{sT}, v3
""")
    for i in range(4):
        P(f"""
    v_add_u32 v4, {4 * i}, v1
    v_xor_b32 v4, v4, v2
    v_lshl_add_u32 v{10 + i}, v4, 4, v3
""")
    P(f"""
    v_lshlrev_b32 v4, 2, v1
    v_xor_b32 v4, v4, v2
    v_lshl_add_u32 v14, v4, 4, v3
    s_lshl_b32 s{sM}, s{sLW}, 12
""")

    def issue_pair(p):
        P(f"s_mov_b32 s{sT}, {p * 16384}")
        P(f"s_add_u32 m0, s{sM}, {(p % 4) * 32768}")
        for i in range(4):
            P(f"buffer_load_dwordx4 v{10 + i}, s[28:31], s{sT} offen offset:{1024 * i}{nt} lds")
        P(f"s_add_u32 m0, s{sM}, {(p % 4) * 32768 + 16384}")
        for i in range(4):
            P(f"buffer_load_dwordx4 v14, s[32:35], s{sT} offen offset:{1024 * i}{nt} lds")

    for p in range(4):
        issue_pair(p)
    for c in range(10):
        P("s_barrier")
    for j in range(16):
        out = min(15, max(3, j + 2)) - j
        P(f"s_waitcnt vmcnt({out * 8})")
        if STAMP:
            P(f"s_memtime s[{60 + 2 * j}:{61 + 2 * j}]")
        P("s_barrier")
        if 1 <= j <= 12:
            issue_pair(j + 3)
    if STAMP:
        P("s_waitcnt lgkmcnt(0)")
        P("v_mov_b32 v221, 0")
        for j in range(17):
            P(f"v_mov_b32 v222, s{60 + 2 * j}")
            P(f"v_mov_b32 v223, s{61 + 2 * j}")
            P(f"buffer_store_dwordx2 v[222:223], v221, s[36:39], s58 offen offset:{(8 + j) * 8 if j < 16 else 0}")
    P("""
K1_END:
    s_endpgm
""")
    P.fix_hazards(["k1_pro", "k1_setup", "k1_phA", "k1_loop", "k1_loop", "k1_epi"])
    P.fix_hazards(["k1_pro", "k1_loader"])
    return ["k1_pro", "k1_setup", "k1_phA", "k1_loop", "k1_epi", "k1_loader"]


def gen_k2(P):
    D = 8
    RB = D * 5120
    sW, sRT, sCT, sT, sA, sBo, sM, sT2 = 40, 41, 42, 43, 44, 45, 46, 47
    P.block("k2")
    P(f"""
oproj_kernel:
    s_cmp_ge_u32 s2, 256
    s_cbranch_scc1 K2_END
    s_load_dwordx4 s[12:15], s[0:1], 32
    s_load_dwordx4 s[16:19], s[0:1], 48
    v_lshrrev_b32 v1, 6, v0
    v_and_b32 v255, 63, v0
    v_readfirstlane_b32 s{sW}, v1
    s_and_b32 s{sT}, s2, 7
    s_lshr_b32 s{sT2}, s2, 3
    {"s_lshr_b32 s43, s2, 5" if "--k2map1" in sys.argv else ""}
    {"s_and_b32 s47, s2, 31" if "--k2map1" in sys.argv else ""}
    s_lshr_b32 s{sRT}, s{sT}, 1
    s_lshl_b32 s{sRT}, s{sRT}, 3
    s_lshr_b32 s{sA}, s{sT2}, 2
    s_add_u32 s{sRT}, s{sRT}, s{sA}
    s_and_b32 s{sCT}, s{sT}, 1
    s_lshl_b32 s{sCT}, s{sCT}, 2
    s_and_b32 s{sA}, s{sT2}, 3
    s_add_u32 s{sCT}, s{sCT}, s{sA}
    s_waitcnt lgkmcnt(0)
    s_mov_b32 s20, s18
    s_and_b32 s21, s19, 0xffff
    s_mov_b32 s22, 8388608
    s_mov_b32 s23, 0x00020000
    s_mov_b32 s24, s12
    s_and_b32 s25, s13, 0xffff
    s_mov_b32 s26, 5242880
    s_mov_b32 s27, 0x00020000
    s_mov_b32 s28, s14
    s_and_b32 s29, s15, 0xffff
    s_mov_b32 s30, 1310720
    s_mov_b32 s31, 0x00020000
""")
    vA0, vA1 = 240, 241
    vB = [242, 243, 244, 245, 246]
    vTr = 247
    P(f"""
    s_lshl_b32 s{sA}, s{sRT}, 18
    s_lshl_b32 s{sT}, s{sW}, 15
    s_add_u32 s{sA}, s{sA}, s{sT}
    v_lshlrev_b32 v{vA0}, 4, v255
    v_add_u32 v{vA1}, 131072, v{vA0}
    s_mul_i32 s{sBo}, s{sW}, {1024 * 1280}
    s_mul_i32 s{sT}, s{sCT}, 160
    s_add_u32 s{sBo}, s{sBo}, s{sT}
    s_mul_i32 s{sM}, s{sW}, {RB}
""")
    for i in range(5):
        P(f"""
    v_add_u32 v1, {64 * i}, v255
    v_mul_u32_u24 v2, 205, v1
    v_lshrrev_b32 v2, 11, v2
    v_mul_u32_u24 v3, 10, v2
    v_sub_u32 v3, v1, v3
    v_mul_u32_u24 v2, 1280, v2
    v_lshl_add_u32 v2, v3, 4, v2
    v_subrev_u32 v{vB[i]}, {1024 * (i % 4)}, v2
""")
    P(f"""
    v_lshrrev_b32 v1, 4, v255
    v_lshlrev_b32 v1, 3, v1
    v_bfe_u32 v2, v255, 2, 2
    v_add_u32 v1, v1, v2
    v_mul_u32_u24 v1, 160, v1
    v_and_b32 v2, 3, v255
    v_lshl_add_u32 v1, v2, 3, v1
    v_add_u32 v{vTr}, s{sM}, v1
""")
    ACC = 0
    AF = 40
    BF = 104

    def issue(s):
        st = s % D
        P(f"s_add_u32 s{sT}, s{sA}, {s * 1024}")
        sa = "0" if "--k2noA" in sys.argv else f"s{sT}"
        P(f"buffer_load_dwordx4 {vr(AF + 8 * st, 4)}, v{vA0}, s[20:23], {sa} offen{K2A}")
        P(f"buffer_load_dwordx4 {vr(AF + 8 * st + 4, 4)}, v{vA1}, s[20:23], {sa} offen{K2A}")
        if "--k2noB" in sys.argv:
            P(f"s_mov_b32 s{sT2}, 0")
        else:
            P(f"s_add_u32 s{sT2}, s{sBo}, {s * 32 * 1280}")
        P(f"s_add_u32 m0, s{sM}, {st * 5120}")
        for i in range(4):
            P(f"buffer_load_dwordx4 v{vB[i]}, s[24:27], s{sT2} offen offset:{1024 * i}{K2B} lds")
        P(f"s_add_u32 m0, s{sM}, {st * 5120 + 4096}")
        P(f"buffer_load_dwordx4 v{vB[4]}, s[24:27], s{sT2} offen{K2B} lds")

    def trB(s):
        st = s % D
        fb = BF + 20 * (s % 2)
        for nb in range(5):
            for j2 in range(2):
                P(f"ds_read_b64_tr_b16 {vr(fb + 4 * nb + 2 * j2, 2)}, v{vTr} offset:{st * 5120 + 640 * j2 + 32 * nb}")

    NS = 32
    for s in range(D):
        issue(s)
    for i in range(40):
        P(f"v_mov_b32 v{ACC + i}, 0")
    issued = D
    P(f"s_waitcnt vmcnt({7 * (issued - 1)})")
    trB(0)
    for s in range(NS):
        if s + 1 < NS:
            P(f"s_waitcnt vmcnt({7 * (issued - (s + 2))})")
            P("s_waitcnt lgkmcnt(5)")
            trB(s + 1)
            P("s_waitcnt lgkmcnt(10)")
        else:
            P("s_waitcnt lgkmcnt(0)")
        st = s % D
        fb = BF + 20 * (s % 2)
        for rb in range(2):
            for nb in range(5):
                a = ACC + 4 * (rb * 5 + nb)
                P(f"v_mfma_f32_16x16x32_bf16 {vr(a, 4)}, {vr(fb + 4 * nb, 4)}, {vr(AF + 8 * st + 4 * rb, 4)}, {vr(a, 4)}")
        if s + D < NS:
            issue(s + D)
            issued += 1
    P(f"""
    v_lshlrev_b32 v{vA0}, 4, v255
    v_add_u32 v{vA0}, s{sM}, v{vA0}
""")
    for tl in range(10):
        P(f"ds_write_b128 v{vA0}, {vr(ACC + 4 * tl, 4)} offset:{tl * 1024}")
    P("s_waitcnt lgkmcnt(0)")
    P("s_barrier")
    P(f"s_mul_i32 s{sT}, s{sW}, 160")
    P(f"s_lshl_b32 s{sT2}, s{sRT}, 5")
    P(f"s_mul_i32 s{sT2}, s{sT2}, 1280")
    P(f"s_mul_i32 s{sA}, s{sCT}, 160")
    P(f"s_add_u32 s{sT2}, s{sT2}, s{sA}")
    for p in range(3):
        if p == 2:
            P("s_mov_b32 exec_hi, 0")
        q, a0, a1, tl, ln, rbv, o = 200, 201, 202, 203, 204, 205, 206 + p
        P(f"""
    v_add_u32 v{q}, s{sT}, v255
    v_add_u32 v{q}, {64 * p}, v{q}
    v_lshlrev_b32 v{a0}, 4, v{q}
    v_add_u32 v{a1}, {2 * RB}, v{a0}
    ds_read_b128 v[64:67], v{a0}
    ds_read_b128 v[68:71], v{a0} offset:{RB}
    ds_read_b128 v[72:75], v{a1}
    ds_read_b128 v[76:79], v{a1} offset:{RB}
    v_lshrrev_b32 v{tl}, 6, v{q}
    v_and_b32 v{ln}, 63, v{q}
    v_cmp_le_u32 vcc, 5, v{tl}
    v_cndmask_b32 v{rbv}, 0, 1, vcc
    v_mul_u32_u24 v{o}, 5, v{rbv}
    v_sub_u32 v{tl}, v{tl}, v{o}
    v_lshlrev_b32 v{rbv}, 4, v{rbv}
    v_and_b32 v{o}, 15, v{ln}
    v_add_u32 v{rbv}, v{rbv}, v{o}
    v_mul_u32_u24 v{rbv}, 1280, v{rbv}
    v_lshl_add_u32 v{rbv}, v{tl}, 5, v{rbv}
    v_lshrrev_b32 v{ln}, 4, v{ln}
    v_lshl_add_u32 v{o}, v{ln}, 3, v{rbv}
    s_waitcnt lgkmcnt(0)
""")
        for i in range(4):
            P(f"v_add_f32 v{64 + i}, v{64 + i}, v{68 + i}")
            P(f"v_add_f32 v{72 + i}, v{72 + i}, v{76 + i}")
        for i in range(4):
            P(f"v_add_f32 v{64 + i}, v{64 + i}, v{72 + i}")
        d = 80 + 2 * p
        P(f"v_cvt_pk_bf16_f32 v{d}, v64, v65")
        P(f"v_cvt_pk_bf16_f32 v{d + 1}, v66, v67")
        P(f"buffer_store_dwordx2 {vr(d, 2)}, v{o}, s[28:31], s{sT2} offen")
    P("""
K2_END:
    s_endpgm
""")
    P.fix_hazards(["k2"])
    return ["k2"]


def main():
    out = sys.argv[1] if len(sys.argv) > 1 else f"cdna_kernels/{NAME}.s"
    nt = " nt" if "--nt" in sys.argv else ""
    ref = open(f"cdna_kernels/{NAME}.s.ref").read().split("\n")
    head = [l for l in ref if l.startswith(";") and "@launch" not in l and "Override" not in l and "grid=ceil" not in l]
    P = Prog()
    b1 = gen_k1(P, nt)
    b2 = gen_k2(P)
    txt = "\n".join(head) + "\n"
    if "--k2only" not in sys.argv:
        txt += "; @launch kernel=attn_kernel grid=(256,1,1) block=(512,1,1) lds=163840\n"
    txt += "; @launch kernel=oproj_kernel grid=(256,1,1) block=(256,1,1) lds=163840\n"
    txt += '.amdgcn_target "amdgcn-amd-amdhsa--gfx950"\n.text\n'
    txt += ".globl attn_kernel\n.p2align 8\n.type attn_kernel,@function\n"
    txt += P.emit(b1)
    txt += ".globl oproj_kernel\n.p2align 8\n.type oproj_kernel,@function\n"
    txt += P.emit(b2)
    txt += '.section .rodata,"a"\n'
    for k in ("attn_kernel", "oproj_kernel"):
        txt += f""".p2align 6
.amdhsa_kernel {k}
  .amdhsa_next_free_vgpr 256
  .amdhsa_next_free_sgpr 102
  .amdhsa_accum_offset 256
  .amdhsa_group_segment_fixed_size 0
  .amdhsa_kernarg_size 64
  .amdhsa_user_sgpr_count 2
  .amdhsa_user_sgpr_kernarg_segment_ptr 1
  .amdhsa_system_sgpr_workgroup_id_x 1
.end_amdhsa_kernel
"""
    open(out, "w").write(txt)


if __name__ == "__main__":
    main()
```

```python
import sys, os, math, struct
sys.path.insert(0, os.path.dirname(__file__))
from dsl import Prog
import gen as G
from gen import vr, f32hex, SCALE_C, NAME, gen_k2

STAMP = "--stamp" in sys.argv
WBASE = 114688
XBASE = 147456
XP = G.opt("xp")
VBASE = 65536


class Cnt:
    def __init__(self, P, name, maxv):
        self.P, self.name, self.maxv = P, name, maxv
        self.tags = []
        self.done = 0

    def issue(self, tag, limit=True):
        if limit and len(self.tags) + 1 - self.done > self.maxv:
            n = self.maxv - 1
            self.P(f"s_waitcnt {self.name}({n})")
            self.done = len(self.tags) - n
        self.tags.append(tag)

    def wait(self, tag):
        idx = max(i for i, t in enumerate(self.tags) if t == tag)
        if idx < self.done:
            return
        n = min(self.maxv, len(self.tags) - 1 - idx)
        self.P(f"s_waitcnt {self.name}({n})")
        self.done = max(self.done, len(self.tags) - n)

    def wait_all(self):
        self.P(f"s_waitcnt {self.name}(0)")
        self.done = len(self.tags)


def merge(groups, valu, start=0):
    k = 0
    for _ in range(min(start, len(valu))):
        valu[k](); k += 1
    n = len(groups)
    rem = len(valu) - k
    base = k
    for i, g in enumerate(groups):
        g()
        tgt = base + (rem * (i + 1)) // n
        while k < tgt:
            valu[k](); k += 1


def gen_k1(P, nt=" nt"):
    sW, sH, sB, sBH, sJ, sSlot, sT, sXo, sWo, sOo, sC, sNC, sSlotV = 40, 41, 42, 43, 44, 45, 46, 47, 48, 49, 50, 51, 52
    if "--map1" in sys.argv:
        MAP = f"""
    s_and_b32 s{sB}, s2, 7
    s_lshr_b32 s{sH}, s2, 3"""
    elif "--map2" in sys.argv:
        MAP = f"""
    s_and_b32 s{sT}, s2, 7
    s_lshr_b32 s{sB}, s{sT}, 1
    s_lshl_b32 s{sB}, s{sB}, 1
    s_lshr_b32 s{sH}, s2, 7
    s_add_u32 s{sB}, s{sB}, s{sH}
    s_and_b32 s{sT}, s{sT}, 1
    s_lshl_b32 s{sT}, s{sT}, 4
    s_lshr_b32 s{sH}, s2, 3
    s_and_b32 s{sH}, s{sH}, 15
    s_add_u32 s{sH}, s{sH}, s{sT}"""
    else:
        MAP = f"""
    s_and_b32 s{sH}, s2, 7
    s_lshl_b32 s{sH}, s{sH}, 2
    s_lshr_b32 s{sT}, s2, 3
    s_and_b32 s{sT}, s{sT}, 3
    s_add_u32 s{sH}, s{sH}, s{sT}
    s_lshr_b32 s{sB}, s2, 5"""
    P.block("k1_pro")
    P(f"""
attn_kernel:
    s_cmp_ge_u32 s2, 256
    s_cbranch_scc1 K1_END
    s_load_dwordx8 s[4:11], s[0:1], 0
    s_load_dwordx4 s[16:19], s[0:1], 48
    v_lshrrev_b32 v1, 6, v0
    v_and_b32 v255, 63, v0
    v_readfirstlane_b32 s{sW}, v1
{MAP}
    s_lshl_b32 s{sBH}, s{sB}, 5
    s_add_u32 s{sBH}, s{sBH}, s{sH}
    s_waitcnt lgkmcnt(0)
    s_mov_b32 s20, s4
    s_and_b32 s21, s5, 0xffff
    s_mov_b32 s22, 1310720
    s_mov_b32 s23, 0x00020000
    s_mov_b32 s24, s10
    s_and_b32 s25, s11, 0xffff
    s_mov_b32 s26, 5242880
    s_mov_b32 s27, 0x00020000
    s_lshl_b32 s{sT}, s{sBH}, 18
    s_add_u32 s28, s6, s{sT}
    s_addc_u32 s29, s7, 0
    s_and_b32 s29, s29, 0xffff
    s_mov_b32 s30, 262144
    s_mov_b32 s31, 0x00020000
    s_add_u32 s32, s8, s{sT}
    s_addc_u32 s33, s9, 0
    s_and_b32 s33, s33, 0xffff
    s_mov_b32 s34, 262144
    s_mov_b32 s35, 0x00020000
    s_mov_b32 s36, s18
    s_and_b32 s37, s19, 0xffff
    s_mov_b32 s38, {33554432 if STAMP else 8388608}
    s_mov_b32 s39, 0x00020000
""")
    if STAMP:
        P(f"""
    s_lshl_b32 s58, s2, 11
    s_lshl_b32 s59, s{sW}, 8
    s_add_u32 s58, s58, s59
    s_add_u32 s58, s58, 16777216
    s_memtime s[92:93]
    s_memrealtime s[94:95]
""")
    P(f"""
    s_cmp_ge_u32 s{sW}, 4
    s_cbranch_scc1 K1_LOADER
""")

    def stamp(slot, sreg=None):
        if not STAMP:
            return False
        P("s_memtime s[60:61]")
        P("s_waitcnt lgkmcnt(0)")
        P("v_mov_b32 v252, s60")
        P("v_mov_b32 v253, s61")
        P("v_mov_b32 v254, 0")
        if sreg is None:
            P(f"buffer_store_dwordx2 v[252:253], v254, s[36:39], s58 offen offset:{slot * 8}")
        else:
            P(f"s_lshl_b32 s59, s{sreg}, 3")
            P(f"s_add_u32 s59, s59, s58")
            P(f"buffer_store_dwordx2 v[252:253], v254, s[36:39], s59 offen offset:{slot * 8}")
        return True

    vL = 255
    vX = 224
    vWr = [225, 226, 227, 228]
    vKb = 229
    vVb = [230, 231, 232, 233]
    vK = list(range(234, 242))
    vV = [242, 243, 244, 245]
    vM, vLs, vAl, vNMC, vT0, vT1 = 246, 247, 248, 249, 250, 251
    vT2, vT3 = 252, 253
    vOo = 224
    t0, t1, t2, t3 = 208, 209, 210, 211

    P.block("k1_setup")
    XD = 6
    XST = 96
    XF = 64
    vXw = [234, 235]
    vXr = [236, 237, 238, 239]
    P(f"""
    v_and_b32 v{t0}, 31, v{vL}
    v_lshrrev_b32 v{t1}, 5, v{vL}
    v_lshrrev_b32 v{t2}, 3, v{vL}
    v_and_b32 v{t3}, 7, v{vL}
    v_mul_u32_u24 v{vX}, 1280, v{t2}
    v_lshl_add_u32 v{vX}, v{t3}, 4, v{vX}
    s_lshl_b32 s{sXo}, s{sB}, 7
    s_lshl_b32 s{sT}, s{sW}, 5
    s_add_u32 s{sXo}, s{sXo}, s{sT}
    s_mul_i32 s{sXo}, s{sXo}, 1280
    s_add_u32 s53, s{sXo}, 10240
    s_add_u32 s54, s{sXo}, 20480
    s_add_u32 s55, s{sXo}, 30720
""")
    vm = Cnt(P, "vmcnt", 63)
    lg = Cnt(P, "lgkmcnt", 15)
    sXi = [sXo, 53, 54, 55]

    def issueX(c):
        base = XST + 16 * (c % XD)
        for i in range(4):
            vm.issue(("X", c))
            P(f"buffer_load_dwordx4 {vr(base + 4 * i, 4)}, v{vX}, s[20:23], s{sXi[i]} offen offset:{128 * c}{XP}")

    for c in range(XD):
        issueX(c)
    P(f"""
    s_lshl_b32 s{sT}, s{sW}, 12
    s_add_u32 s{sT}, s{sT}, {XBASE}
    v_lshrrev_b32 v{vT0}, 4, v{vL}
    v_xor_b32 v{vT1}, v{vT0}, v{t3}
    v_lshlrev_b32 v{vT1}, 4, v{vT1}
    v_lshl_add_u32 v{vT1}, v{t2}, 7, v{vT1}
    v_add_u32 v{vXw[0]}, s{sT}, v{vT1}
    v_xor_b32 v{vXw[1]}, 64, v{vXw[0]}
    v_bfe_u32 v{vT0}, v{vL}, 1, 3
    v_xor_b32 v{vT0}, v{vT0}, v{t1}
    v_lshlrev_b32 v{vT0}, 4, v{vT0}
    v_lshl_add_u32 v{vT0}, v{t0}, 7, v{vT0}
    v_add_u32 v{vXr[0]}, s{sT}, v{vT0}
    v_xor_b32 v{vXr[1]}, 32, v{vXr[0]}
    v_xor_b32 v{vXr[2]}, 64, v{vXr[0]}
    v_xor_b32 v{vXr[3]}, 96, v{vXr[0]}
""")
    P(f"""
    v_and_b32 v{t3}, 15, v{vL}
    v_xor_b32 v{vT0}, v{t1}, v{t3}
    v_lshlrev_b32 v{vT0}, 4, v{vT0}
    v_lshl_add_u32 v{vKb}, v{t0}, 8, v{vT0}
    v_bfe_u32 v{vT0}, v{vL}, 4, 1
    v_lshlrev_b32 v{vT0}, 5, v{vT0}
    v_and_b32 v{vT1}, 1, v{vL}
    v_lshl_add_u32 v{vT0}, v{vT1}, 4, v{vT0}
    v_bfe_u32 v{vT1}, v{vL}, 1, 1
    v_lshl_add_u32 v{vT0}, v{vT1}, 3, v{vT0}
    v_bfe_u32 v{vT1}, v{vL}, 2, 2
    v_lshl_add_u32 v{vT0}, v{vT1}, 8, v{vT0}
""")
    for t in range(4):
        P(f"""
    v_xor_b32 v{vT2}, {t}, v{vT1}
    v_lshl_add_u32 v{vT2}, v{vT2}, 6, v{vT0}
    v_lshl_add_u32 v{vWr[t]}, v{t1}, 11, v{vT2}
    v_add_u32 v{vWr[t]}, {WBASE}, v{vWr[t]}
    v_lshl_add_u32 v{vVb[t]}, v{t1}, 10, v{vT2}
    v_add_u32 v{vVb[t]}, {VBASE}, v{vVb[t]}
""")
    P(f"""
    s_mov_b32 s{sC}, {f32hex(SCALE_C)}
    s_mov_b32 s{sNC}, {f32hex(-SCALE_C)}
""")
    for i in range(64):
        P(f"v_mov_b32 v{i}, 0")

    P.block("k1_phA")

    def trW(c, s):
        fb = 192 + 16 * (s % 2)
        for t in range(4):
            for j2 in range(2):
                lg.issue(("W", c, s))
                P(f"ds_read_b64_tr_b16 {vr(fb + 4 * t + 2 * j2, 2)}, v{vWr[t]} offset:{(c % 2) * 16384 + 4096 * s + 1024 * j2}")

    def xstage(c):
        base = XST + 16 * (c % XD)
        vm.wait(("X", c))
        for i in range(4):
            lg.issue(("XW", c))
            P(f"ds_write_b128 v{vXw[i % 2]}, {vr(base + 4 * i, 4)} offset:{1024 * i}")
        lg.wait(("XW", c))
        for s_ in range(4):
            lg.issue(("XR", c))
            P(f"ds_read_b128 {vr(XF + 16 * (c % 2) + 4 * s_, 4)}, v{vXr[s_]}")
        if c + XD < 10:
            issueX(c + XD)

    xstage(0)
    for c in range(10):
        P("s_barrier")
        if c in (0, 5) and stamp(1 if c == 0 else 2):
            vm.issue(("S", c))
            lg.done = len(lg.tags)
        trW(c, 0)
        lg.wait(("XR", c))
        for s in range(4):
            if s < 3:
                trW(c, s + 1)
            lg.wait(("W", c, s))
            fb = 192 + 16 * (s % 2)
            for t in range(4):
                P(f"v_mfma_f32_32x32x16_bf16 {vr(16 * t, 16)}, {vr(fb + 4 * t, 4)}, {vr(XF + 16 * (c % 2) + 4 * s, 4)}, {vr(16 * t, 16)}")
            if s == 1 and c + 1 < 10:
                xstage(c + 1)

    SA, SB, KF, VF = 96, 128, 160, 192
    for t in range(4):
        for u in range(2):
            for j in range(4):
                a = 16 * t + 8 * u + 2 * j
                P(f"v_cvt_pk_bf16_f32 v{64 + 4 * (2 * t + u) + j}, v{a}, v{a + 1}")
    for i in range(64):
        P(f"v_mov_b32 v{i}, 0")
    P(f"""
    v_mov_b32 v{vM}, 0xff800000
    v_mov_b32 v{vLs}, 0
    s_mov_b32 s{sJ}, 0
    v_mov_b32 v{vK[0]}, v{vKb}
""")
    for s in range(1, 8):
        P(f"v_xor_b32 v{vK[s]}, {s << 5}, v{vK[0]}")
    stamp(3)
    P("s_barrier")

    def kread(blk, s):
        lg.issue(("K", blk, s))
        P(f"ds_read_b128 {vr(KF + 4 * s, 4)}, v{vK[s]}" + (" offset:8192" if blk else ""))

    def qk_groups(Sd):
        gs = []
        for blk in range(2):
            for s in range(8):
                def g(blk=blk, s=s):
                    lg.wait(("K", blk, s))
                    c = "0" if s == 0 else vr(Sd + 16 * blk, 16)
                    P(f"v_mfma_f32_32x32x16_bf16 {vr(Sd + 16 * blk, 16)}, {vr(KF + 4 * s, 4)}, {vr(64 + 4 * s, 4)}, {c}")
                    if blk == 0:
                        kread(1, s)
                gs.append(g)
        return gs

    def op(text):
        return lambda: P(text)

    def max_ops(S):
        o = []
        o.append(op(f"v_max3_f32 v{vT2}, v{S}, v{S + 1}, v{S + 2}"))
        o.append(op(f"v_max3_f32 v{vT3}, v{S + 3}, v{S + 4}, v{S + 5}"))
        for k in range(13):
            tg = vT2 if k % 2 == 0 else vT3
            o.append(op(f"v_max3_f32 v{tg}, v{tg}, v{S + 6 + 2 * k}, v{S + 7 + 2 * k}"))
        o.append(op(f"v_max3_f32 v{vT2}, v{vT2}, v{vT3}, v{vM}"))
        o.append(op(f"v_mov_b32 v{vT3}, v{vT2}"))
        o.append(op(f"v_permlane32_swap_b32 v{vT2}, v{vT3}"))
        o.append(op(f"v_max_f32 v{vT2}, v{vT2}, v{vT3}"))
        o.append(op(f"v_sub_f32 v{vT3}, v{vM}, v{vT2}"))
        o.append(op(f"v_mul_f32 v{vT3}, s{sC}, v{vT3}"))
        o.append(op(f"v_exp_f32 v{vAl}, v{vT3}"))
        o.append(op(f"v_mov_b32 v{vM}, v{vT2}"))
        o.append(op(f"v_mul_f32 v{vNMC}, s{sNC}, v{vT2}"))
        return o

    def expblk(S, first):
        ops = []
        for i in range(16):
            ops.append(op(f"v_fma_f32 v{S + i}, v{S + i}, s{sC}, v{vNMC}"))
            ops.append(op(f"v_exp_f32 v{S + i}, v{S + i}"))
            if i >= 1:
                j = i - 1
                tg = vT0 if j % 2 == 0 else vT1
                if first and j < 2:
                    ops.append(op(f"v_mov_b32 v{tg}, v{S + j}"))
                else:
                    ops.append(op(f"v_add_f32 v{tg}, v{tg}, v{S + j}"))
                if j % 2 == 1:
                    ops.append(op(f"v_cvt_pk_bf16_f32 v{S + j // 2}, v{S + j - 1}, v{S + j}"))
        ops.append(op(f"v_add_f32 v{vT1}, v{vT1}, v{S + 15}"))
        ops.append(op(f"v_cvt_pk_bf16_f32 v{S + 7}, v{S + 14}, v{S + 15}"))
        return ops

    def vread(ks):
        fb = VF + 16 * (ks % 2)
        for t in range(4):
            for j2 in range(2):
                lg.issue(("V", ks, t))
                P(f"ds_read_b64_tr_b16 {vr(fb + 4 * t + 2 * j2, 2)}, v{vV[t]} offset:{4096 * ks + 2048 * j2}")

    def pv_groups(S, kss, after=None):
        gs = []
        for ks in kss:
            for t in range(4):
                def g(ks=ks, t=t):
                    lg.wait(("V", ks, t))
                    fb = VF + 16 * (ks % 2)
                    pb = S + 16 * (ks // 2) + 4 * (ks % 2)
                    P(f"v_mfma_f32_32x32x16_bf16 {vr(16 * t, 16)}, {vr(fb + 4 * t, 4)}, {vr(pb, 4)}, {vr(16 * t, 16)}")
                    if t == 3 and ks + 2 < 4:
                        vread(ks + 2)
                gs.append(g)
        return gs

    for s in range(8):
        kread(0, s)
    merge(qk_groups(SA), [])
    for f in max_ops(SA):
        f()

    def body(cur, nxt, name):
        P.block(name)
        lg.tags = []; lg.done = 0
        P("s_barrier")
        stamp(8, sJ)
        P(f"""
    s_add_u32 s{sSlot}, s{sJ}, 1
    s_and_b32 s{sSlot}, s{sSlot}, 3
    s_lshl_b32 s{sSlot}, s{sSlot}, 14
    s_and_b32 s{sSlotV}, s{sJ}, 3
    s_lshl_b32 s{sSlotV}, s{sSlotV}, 14
    v_add_u32 v{vK[0]}, s{sSlot}, v{vKb}
""")
        for s in range(1, 8):
            P(f"v_xor_b32 v{vK[s]}, {s << 5}, v{vK[0]}")
        for s in range(8):
            kread(0, s)
        for t in range(4):
            P(f"v_add_u32 v{vV[t]}, s{sSlotV}, v{vVb[t]}")
        va = expblk(cur, True) + [op(f"v_mul_f32 v{i}, v{vAl}, v{i}") for i in range(64)]
        gs = qk_groups(nxt)
        g10, g13 = gs[10], gs[13]
        gs[10] = lambda: (g10(), vread(0))
        gs[13] = lambda: (g13(), vread(1))
        merge(gs, va, start=10)
        merge(pv_groups(cur, [0, 1]), expblk(cur + 16, False))
        tail = [op(f"v_add_f32 v{vT0}, v{vT0}, v{vT1}"), op(f"v_fma_f32 v{vLs}, v{vLs}, v{vAl}, v{vT0}")] + max_ops(nxt)
        merge(pv_groups(cur, [2, 3]), tail)
        P(f"s_add_u32 s{sJ}, s{sJ}, 1")

    P.block("k1_lbl")
    P("K1_LOOP:")
    body(SA, SB, "k1_loopA")
    body(SB, SA, "k1_loopB")
    P(f"""
    s_cmp_lt_u32 s{sJ}, 16
    s_cbranch_scc1 K1_LOOP
""")

    P.block("k1_epi")
    stamp(4)
    P(f"""
    v_mov_b32 v{vT1}, v{vLs}
    v_permlane32_swap_b32 v{vLs}, v{vT1}
    v_add_f32 v{vLs}, v{vLs}, v{vT1}
    v_rcp_f32 v{vAl}, v{vLs}
    v_bfe_u32 v{vT0}, v{vL}, 4, 1
    v_lshlrev_b32 v{vT0}, 17, v{vT0}
    v_lshrrev_b32 v{vT1}, 5, v{vL}
    v_lshl_add_u32 v{vT0}, v{vT1}, 8, v{vT0}
    v_and_b32 v{vT1}, 15, v{vL}
    v_lshl_add_u32 v{vOo}, v{vT1}, 4, v{vT0}
    s_lshl_b32 s{sOo}, s{sB}, 3
    s_lshl_b32 s{sT}, s{sW}, 1
    s_add_u32 s{sOo}, s{sOo}, s{sT}
    s_lshl_b32 s{sOo}, s{sOo}, 17
    s_lshl_b32 s{sT}, s{sH}, 12
    s_add_u32 s{sOo}, s{sOo}, s{sT}
""")
    for i in range(64):
        P(f"v_mul_f32 v{i}, v{vAl}, v{i}")
    for t in range(4):
        for u in range(2):
            d = 64 + 4 * (2 * t + u)
            for j in range(4):
                a = 16 * t + 8 * u + 2 * j
                P(f"v_cvt_pk_bf16_f32 v{d + j}, v{a}, v{a + 1}")
            P(f"buffer_store_dwordx4 {vr(d, 4)}, v{vOo}, s[36:39], s{sOo} offen offset:{t * 1024 + u * 512}")
    if STAMP:
        P("s_waitcnt vmcnt(0)")
        stamp(5)
        P("s_memrealtime s[96:97]")
        P("s_waitcnt lgkmcnt(0)")
        for k, sr in ((0, 92), (6, 94), (7, 96)):
            P(f"v_mov_b32 v{200 + 2 * k}, s{sr}")
            P(f"v_mov_b32 v{201 + 2 * k}, s{sr + 1}")
            P(f"buffer_store_dwordx2 v[{200 + 2 * k}:{201 + 2 * k}], v254, s[36:39], s58 offen offset:{8 * k}")
    P("s_endpgm")

    P.block("k1_loader")
    sLW, sM = 44, 45
    lvm = Cnt(P, "vmcnt", 63)
    vWg, vWw = 8, 9
    WST = 16
    P(f"""
K1_LOADER:
    s_sub_u32 s{sLW}, s{sW}, 4
    v_lshrrev_b32 v1, 4, v255
    v_and_b32 v2, 15, v255
    v_lshlrev_b32 v{vWg}, 13, v1
    v_lshl_add_u32 v{vWg}, v2, 4, v{vWg}
    s_lshl_b32 s{sWo}, s{sH}, 8
    s_lshl_b32 s{sT}, s{sLW}, 17
    s_add_u32 s{sWo}, s{sWo}, s{sT}
""")
    for c in range(10):
        for i in range(4):
            if "--now" in sys.argv:
                P(f"s_mov_b32 s{sT}, 0")
            else:
                P(f"s_add_u32 s{sT}, s{sWo}, {c * 524288 + i * 32768}")
            lvm.issue(("W", c))
            P(f"buffer_load_dwordx4 {vr(WST + 16 * c + 4 * i, 4)}, v{vWg}, s[24:27], s{sT} offen{G.XW}")
    if STAMP:
        P("s_memtime s[96:97]")
    P(f"""
    s_lshl_b32 s{sT}, s{sLW}, 12
    v_lshlrev_b32 v3, 8, v1
    v_add_u32 v3, s{sT}, v3
""")
    for i in range(4):
        P(f"""
    v_add_u32 v4, {4 * i}, v1
    v_xor_b32 v4, v4, v2
    v_lshl_add_u32 v{10 + i}, v4, 4, v3
""")
    P(f"""
    v_lshlrev_b32 v4, 2, v1
    v_xor_b32 v4, v4, v2
    v_lshl_add_u32 v14, v4, 4, v3
    v_add_u32 v{vWw}, {WBASE}, v14
    s_lshl_b32 s{sM}, s{sLW}, 12
""")

    def issueK(p):
        P(f"s_mov_b32 s{sT}, {p * 16384}")
        P(f"s_add_u32 m0, s{sM}, {(p % 4) * 16384}")
        for i in range(4):
            lvm.issue(("K", p), limit=False)
            P(f"buffer_load_dwordx4 v{10 + i}, s[28:31], s{sT} offen offset:{1024 * i}{nt} lds")

    def issueV(p):
        P(f"s_mov_b32 s{sT}, {p * 16384}")
        P(f"s_add_u32 m0, s{sM}, {VBASE + (p % 4) * 16384}")
        for i in range(4):
            lvm.issue(("V", p), limit=False)
            P(f"buffer_load_dwordx4 v14, s[32:35], s{sT} offen offset:{1024 * i}{nt} lds")

    LATE = "--latekv" in sys.argv
    if not LATE:
        issueK(0); issueK(1); issueV(0); issueK(2); issueV(1)
    for c in range(10):
        if STAMP and c == 0:
            P("s_memtime s[98:99]")
        lvm.wait(("W", c))
        if STAMP and c == 0:
            P("s_memtime s[100:101]")
        if STAMP and c == 9:
            P("s_memtime s[56:57]")
        for i in range(4):
            P(f"ds_write_b128 v{vWw}, {vr(WST + 16 * c + 4 * i, 4)} offset:{(c % 2) * 16384 + 1024 * i}")
        P("s_waitcnt lgkmcnt(0)")
        P("s_barrier")
        if c == 0 and not LATE:
            issueK(3); issueV(2)
        if c == 9 and not LATE:
            issueV(3)
        if c == 9 and LATE:
            issueK(0); issueK(1); issueV(0); issueK(2); issueV(1); issueK(3); issueV(2); issueV(3)
    lvm.wait(("K", 0))
    P("s_barrier")
    for j in range(16):
        if j + 1 <= 15:
            lvm.wait(("K", j + 1))
        lvm.wait(("V", j))
        if STAMP:
            P(f"s_memtime s[{60 + 2 * j}:{61 + 2 * j}]")
        P("s_barrier")
        if j + 4 <= 15:
            issueK(j + 4)
        if j >= 1 and j + 3 <= 15:
            issueV(j + 3)
    if STAMP:
        P("s_waitcnt lgkmcnt(0)")
        P("v_mov_b32 v221, 0")
        for j in range(17):
            P(f"v_mov_b32 v222, s{60 + 2 * j}")
            P(f"v_mov_b32 v223, s{61 + 2 * j}")
            P(f"buffer_store_dwordx2 v[222:223], v221, s[36:39], s58 offen offset:{(8 + j) * 8 if j < 16 else 0}")
        for k, sr in ((1, 96), (2, 98), (3, 100), (4, 56)):
            P(f"v_mov_b32 v222, s{sr}")
            P(f"v_mov_b32 v223, s{sr + 1}")
            P(f"buffer_store_dwordx2 v[222:223], v221, s[36:39], s58 offen offset:{k * 8}")
    P("""
K1_END:
    s_endpgm
""")
    P.fix_hazards(["k1_pro", "k1_setup", "k1_phA", "k1_lbl", "k1_loopA", "k1_loopB", "k1_lbl", "k1_loopA", "k1_loopB", "k1_epi"])
    P.fix_hazards(["k1_pro", "k1_loader"])
    return ["k1_pro", "k1_setup", "k1_phA", "k1_lbl", "k1_loopA", "k1_loopB", "k1_epi", "k1_loader"]


def main():
    out = sys.argv[1] if len(sys.argv) > 1 and not sys.argv[1].startswith("--") else f"cdna_kernels/{NAME}.s"
    ref = open(f"cdna_kernels/{NAME}.s.ref").read().split("\n")
    head = [l for l in ref if l.startswith(";") and "@launch" not in l and "Override" not in l and "grid=ceil" not in l]
    P = Prog()
    b1 = gen_k1(P, "" if "--nont" in sys.argv else " nt")
    b2 = gen_k2(P)
    txt = "\n".join(head) + "\n"
    txt += "; @launch kernel=attn_kernel grid=(256,1,1) block=(512,1,1) lds=163840\n"
    txt += "; @launch kernel=oproj_kernel grid=(256,1,1) block=(256,1,1) lds=163840\n"
    txt += '.amdgcn_target "amdgcn-amd-amdhsa--gfx950"\n.text\n'
    txt += ".globl attn_kernel\n.p2align 8\n.type attn_kernel,@function\n"
    txt += P.emit(b1)
    txt += ".globl oproj_kernel\n.p2align 8\n.type oproj_kernel,@function\n"
    txt += P.emit(b2)
    txt += '.section .rodata,"a"\n'
    for k in ("attn_kernel", "oproj_kernel"):
        txt += f""".p2align 6
.amdhsa_kernel {k}
  .amdhsa_next_free_vgpr 256
  .amdhsa_next_free_sgpr 102
  .amdhsa_accum_offset 256
  .amdhsa_group_segment_fixed_size 0
  .amdhsa_kernarg_size 64
  .amdhsa_user_sgpr_count 2
  .amdhsa_user_sgpr_kernarg_segment_ptr 1
  .amdhsa_system_sgpr_workgroup_id_x 1
.end_amdhsa_kernel
"""
    open(out, "w").write(txt)


if __name__ == "__main__":
    main()
```

```python
import sys, os, math, struct
sys.path.insert(0, os.path.dirname(__file__))
from dsl import Prog
import gen as G
from gen import vr, f32hex, SCALE_C, NAME, gen_k2

STAMP = "--stamp" in sys.argv
DBG = "--dbg" in sys.argv
WBASE = 114688
XBASE = 147456
XP = G.opt("xp")
VBASE = 65536


class Cnt:
    def __init__(self, P, name, maxv):
        self.P, self.name, self.maxv = P, name, maxv
        self.tags = []
        self.done = 0

    def issue(self, tag, limit=True):
        if limit and len(self.tags) + 1 - self.done > self.maxv:
            n = self.maxv - 1
            self.P(f"s_waitcnt {self.name}({n})")
            self.done = len(self.tags) - n
        self.tags.append(tag)

    def wait(self, tag):
        idx = max(i for i, t in enumerate(self.tags) if t == tag)
        if idx < self.done:
            return
        n = min(self.maxv, len(self.tags) - 1 - idx)
        self.P(f"s_waitcnt {self.name}({n})")
        self.done = max(self.done, len(self.tags) - n)

    def wait_all(self):
        self.P(f"s_waitcnt {self.name}(0)")
        self.done = len(self.tags)


def merge(groups, valu, start=0):
    k = 0
    for _ in range(min(start, len(valu))):
        valu[k](); k += 1
    n = len(groups)
    rem = len(valu) - k
    base = k
    for i, g in enumerate(groups):
        g()
        tgt = base + (rem * (i + 1)) // n
        while k < tgt:
            valu[k](); k += 1


def gen_k1(P, nt=" nt"):
    sW, sH, sB, sBH, sJ, sSlot, sT, sXo, sWo, sOo, sC, sNC, sSlotV = 40, 41, 42, 43, 44, 45, 46, 47, 48, 49, 50, 51, 52
    if "--map1" in sys.argv:
        MAP = f"""
    s_and_b32 s{sB}, s2, 7
    s_lshr_b32 s{sH}, s2, 3"""
    elif "--map2" in sys.argv:
        MAP = f"""
    s_and_b32 s{sT}, s2, 7
    s_lshr_b32 s{sB}, s{sT}, 1
    s_lshl_b32 s{sB}, s{sB}, 1
    s_lshr_b32 s{sH}, s2, 7
    s_add_u32 s{sB}, s{sB}, s{sH}
    s_and_b32 s{sT}, s{sT}, 1
    s_lshl_b32 s{sT}, s{sT}, 4
    s_lshr_b32 s{sH}, s2, 3
    s_and_b32 s{sH}, s{sH}, 15
    s_add_u32 s{sH}, s{sH}, s{sT}"""
    else:
        MAP = f"""
    s_and_b32 s{sH}, s2, 7
    s_lshl_b32 s{sH}, s{sH}, 2
    s_lshr_b32 s{sT}, s2, 3
    s_and_b32 s{sT}, s{sT}, 3
    s_add_u32 s{sH}, s{sH}, s{sT}
    s_lshr_b32 s{sB}, s2, 5"""
    P.block("k1_pro")
    P(f"""
attn_kernel:
    s_cmp_ge_u32 s2, 256
    s_cbranch_scc1 K1_END
    s_load_dwordx8 s[4:11], s[0:1], 0
    s_load_dwordx4 s[16:19], s[0:1], 48
    v_lshrrev_b32 v1, 6, v0
    v_and_b32 v255, 63, v0
    v_readfirstlane_b32 s{sW}, v1
{MAP}
    s_lshl_b32 s{sBH}, s{sB}, 5
    s_add_u32 s{sBH}, s{sBH}, s{sH}
    s_waitcnt lgkmcnt(0)
    s_mov_b32 s20, s4
    s_and_b32 s21, s5, 0xffff
    s_mov_b32 s22, 1310720
    s_mov_b32 s23, 0x00020000
    s_mov_b32 s24, s10
    s_and_b32 s25, s11, 0xffff
    s_mov_b32 s26, 5242880
    s_mov_b32 s27, 0x00020000
    s_lshl_b32 s{sT}, s{sBH}, 18
    s_add_u32 s28, s6, s{sT}
    s_addc_u32 s29, s7, 0
    s_and_b32 s29, s29, 0xffff
    s_mov_b32 s30, 262144
    s_mov_b32 s31, 0x00020000
    s_add_u32 s32, s8, s{sT}
    s_addc_u32 s33, s9, 0
    s_and_b32 s33, s33, 0xffff
    s_mov_b32 s34, 262144
    s_mov_b32 s35, 0x00020000
    s_mov_b32 s36, s18
    s_and_b32 s37, s19, 0xffff
    s_mov_b32 s38, {33554432 if STAMP else 8388608}
    s_mov_b32 s39, 0x00020000
""")
    if STAMP:
        P(f"""
    s_lshl_b32 s58, s2, 11
    s_lshl_b32 s59, s{sW}, 8
    s_add_u32 s58, s58, s59
    s_add_u32 s58, s58, 16777216
    s_memtime s[92:93]
    s_memrealtime s[94:95]
""")
    if DBG:
        P("""
    s_memtime s[92:93]
    s_memrealtime s[94:95]
""")
    P(f"""
    s_cmp_ge_u32 s{sW}, 4
    s_cbranch_scc1 K1_LOADER
""")

    def dstamp(k):
        if DBG:
            P(f"s_memtime s[{60 + 2 * k}:{61 + 2 * k}]")

    def stamp(slot, sreg=None):
        if not STAMP:
            return False
        P("s_memtime s[60:61]")
        P("s_waitcnt lgkmcnt(0)")
        P("v_mov_b32 v252, s60")
        P("v_mov_b32 v253, s61")
        P("v_mov_b32 v254, 0")
        if sreg is None:
            P(f"buffer_store_dwordx2 v[252:253], v254, s[36:39], s58 offen offset:{slot * 8}")
        else:
            P(f"s_lshl_b32 s59, s{sreg}, 3")
            P(f"s_add_u32 s59, s59, s58")
            P(f"buffer_store_dwordx2 v[252:253], v254, s[36:39], s59 offen offset:{slot * 8}")
        return True

    vL = 255
    vX = 224
    vWr = [225, 226, 227, 228]
    vKb = 229
    vVb = [230, 231, 232, 233]
    vK = list(range(234, 242))
    vV = [242, 243, 244, 245]
    vM, vLs, vAl, vNMC, vT0, vT1 = 246, 247, 248, 249, 250, 251
    vT2, vT3 = 252, 253
    vOo = 224
    t0, t1, t2, t3 = 208, 209, 210, 211

    P.block("k1_setup")
    XD = 6
    XST = 96
    XF = 64
    vXw = [234, 235]
    vXr = [236, 237, 238, 239]
    P(f"""
    v_and_b32 v{t0}, 31, v{vL}
    v_lshrrev_b32 v{t1}, 5, v{vL}
    v_lshrrev_b32 v{t2}, 3, v{vL}
    v_and_b32 v{t3}, 7, v{vL}
    v_mul_u32_u24 v{vX}, 1280, v{t2}
    v_lshl_add_u32 v{vX}, v{t3}, 4, v{vX}
    s_lshl_b32 s{sXo}, s{sB}, 7
    s_lshl_b32 s{sT}, s{sW}, 5
    s_add_u32 s{sXo}, s{sXo}, s{sT}
    s_mul_i32 s{sXo}, s{sXo}, 1280
    s_add_u32 s53, s{sXo}, 10240
    s_add_u32 s54, s{sXo}, 20480
    s_add_u32 s55, s{sXo}, 30720
""")
    vm = Cnt(P, "vmcnt", 63)
    lg = Cnt(P, "lgkmcnt", 15)
    sXi = [sXo, 53, 54, 55]

    def issueX(c):
        base = XST + 16 * (c % XD)
        for i in range(4):
            vm.issue(("X", c))
            P(f"buffer_load_dwordx4 {vr(base + 4 * i, 4)}, v{vX}, s[20:23], s{sXi[i]} offen offset:{128 * c}{XP}")

    for c in range(XD):
        issueX(c)
    P(f"""
    s_lshl_b32 s{sT}, s{sW}, 12
    s_add_u32 s{sT}, s{sT}, {XBASE}
    v_lshrrev_b32 v{vT0}, 4, v{vL}
    v_xor_b32 v{vT1}, v{vT0}, v{t3}
    v_lshlrev_b32 v{vT1}, 4, v{vT1}
    v_lshl_add_u32 v{vT1}, v{t2}, 7, v{vT1}
    v_add_u32 v{vXw[0]}, s{sT}, v{vT1}
    v_xor_b32 v{vXw[1]}, 64, v{vXw[0]}
    v_bfe_u32 v{vT0}, v{vL}, 1, 3
    v_xor_b32 v{vT0}, v{vT0}, v{t1}
    v_lshlrev_b32 v{vT0}, 4, v{vT0}
    v_lshl_add_u32 v{vT0}, v{t0}, 7, v{vT0}
    v_add_u32 v{vXr[0]}, s{sT}, v{vT0}
    v_xor_b32 v{vXr[1]}, 32, v{vXr[0]}
    v_xor_b32 v{vXr[2]}, 64, v{vXr[0]}
    v_xor_b32 v{vXr[3]}, 96, v{vXr[0]}
""")
    P(f"""
    v_and_b32 v{t3}, 15, v{vL}
    v_xor_b32 v{vT0}, v{t1}, v{t3}
    v_lshlrev_b32 v{vT0}, 4, v{vT0}
    v_lshl_add_u32 v{vKb}, v{t0}, 8, v{vT0}
    v_bfe_u32 v{vT0}, v{vL}, 4, 1
    v_lshlrev_b32 v{vT0}, 5, v{vT0}
    v_and_b32 v{vT1}, 1, v{vL}
    v_lshl_add_u32 v{vT0}, v{vT1}, 4, v{vT0}
    v_bfe_u32 v{vT1}, v{vL}, 1, 1
    v_lshl_add_u32 v{vT0}, v{vT1}, 3, v{vT0}
    v_bfe_u32 v{vT1}, v{vL}, 2, 2
    v_lshl_add_u32 v{vT0}, v{vT1}, 8, v{vT0}
""")
    for t in range(4):
        P(f"""
    v_xor_b32 v{vT2}, {t}, v{vT1}
    v_lshl_add_u32 v{vT2}, v{vT2}, 6, v{vT0}
    v_lshl_add_u32 v{vWr[t]}, v{t1}, 11, v{vT2}
    v_add_u32 v{vWr[t]}, {WBASE}, v{vWr[t]}
    v_lshl_add_u32 v{vVb[t]}, v{t1}, 10, v{vT2}
    v_add_u32 v{vVb[t]}, {VBASE}, v{vVb[t]}
""")
    P(f"""
    s_mov_b32 s{sC}, {f32hex(SCALE_C)}
    s_mov_b32 s{sNC}, {f32hex(-SCALE_C)}
""")
    for i in range(64):
        P(f"v_mov_b32 v{i}, 0")

    P.block("k1_phA")

    def trW(c, s):
        fb = 192 + 16 * (s % 2)
        for t in range(4):
            for j2 in range(2):
                lg.issue(("W", c, s))
                P(f"ds_read_b64_tr_b16 {vr(fb + 4 * t + 2 * j2, 2)}, v{vWr[t]} offset:{(c % 2) * 16384 + 4096 * s + 1024 * j2}")

    def xstage(c):
        base = XST + 16 * (c % XD)
        vm.wait(("X", c))
        for i in range(4):
            lg.issue(("XW", c))
            P(f"ds_write_b128 v{vXw[i % 2]}, {vr(base + 4 * i, 4)} offset:{1024 * i}")
        lg.wait(("XW", c))
        for s_ in range(4):
            lg.issue(("XR", c))
            P(f"ds_read_b128 {vr(XF + 16 * (c % 2) + 4 * s_, 4)}, v{vXr[s_]}")
        if c + XD < 10:
            issueX(c + XD)

    xstage(0)
    for c in range(10):
        P("s_barrier")
        if c in (0, 5):
            dstamp(0 if c == 0 else 1)
        if c in (0, 5) and stamp(1 if c == 0 else 2):
            vm.issue(("S", c))
            lg.done = len(lg.tags)
        trW(c, 0)
        lg.wait(("XR", c))
        for s in range(4):
            if s < 3:
                trW(c, s + 1)
            lg.wait(("W", c, s))
            fb = 192 + 16 * (s % 2)
            for t in range(4):
                P(f"v_mfma_f32_32x32x16_bf16 {vr(16 * t, 16)}, {vr(fb + 4 * t, 4)}, {vr(XF + 16 * (c % 2) + 4 * s, 4)}, {vr(16 * t, 16)}")
            if s == 1 and c + 1 < 10:
                xstage(c + 1)

    SA, SB, KF, VF = 96, 128, 160, 192
    for t in range(4):
        for u in range(2):
            for j in range(4):
                a = 16 * t + 8 * u + 2 * j
                P(f"v_cvt_pk_bf16_f32 v{64 + 4 * (2 * t + u) + j}, v{a}, v{a + 1}")
    for i in range(64):
        P(f"v_mov_b32 v{i}, 0")
    P(f"""
    v_mov_b32 v{vM}, 0xff800000
    v_mov_b32 v{vLs}, 0
    s_mov_b32 s{sJ}, 0
    v_mov_b32 v{vK[0]}, v{vKb}
""")
    for s in range(1, 8):
        P(f"v_xor_b32 v{vK[s]}, {s << 5}, v{vK[0]}")
    stamp(3)
    dstamp(2)
    P("s_barrier")

    def kread(blk, s):
        lg.issue(("K", blk, s))
        P(f"ds_read_b128 {vr(KF + 4 * s, 4)}, v{vK[s]}" + (" offset:8192" if blk else ""))

    def qk_groups(Sd):
        gs = []
        for blk in range(2):
            for s in range(8):
                def g(blk=blk, s=s):
                    lg.wait(("K", blk, s))
                    c = "0" if s == 0 else vr(Sd + 16 * blk, 16)
                    P(f"v_mfma_f32_32x32x16_bf16 {vr(Sd + 16 * blk, 16)}, {vr(KF + 4 * s, 4)}, {vr(64 + 4 * s, 4)}, {c}")
                    if blk == 0:
                        kread(1, s)
                gs.append(g)
        return gs

    def op(text):
        return lambda: P(text)

    def max_ops(S):
        o = []
        o.append(op(f"v_max3_f32 v{vT2}, v{S}, v{S + 1}, v{S + 2}"))
        o.append(op(f"v_max3_f32 v{vT3}, v{S + 3}, v{S + 4}, v{S + 5}"))
        for k in range(13):
            tg = vT2 if k % 2 == 0 else vT3
            o.append(op(f"v_max3_f32 v{tg}, v{tg}, v{S + 6 + 2 * k}, v{S + 7 + 2 * k}"))
        o.append(op(f"v_max3_f32 v{vT2}, v{vT2}, v{vT3}, v{vM}"))
        o.append(op(f"v_mov_b32 v{vT3}, v{vT2}"))
        o.append(op(f"v_permlane32_swap_b32 v{vT2}, v{vT3}"))
        o.append(op(f"v_max_f32 v{vT2}, v{vT2}, v{vT3}"))
        o.append(op(f"v_sub_f32 v{vT3}, v{vM}, v{vT2}"))
        o.append(op(f"v_mul_f32 v{vT3}, s{sC}, v{vT3}"))
        o.append(op(f"v_exp_f32 v{vAl}, v{vT3}"))
        o.append(op(f"v_mov_b32 v{vM}, v{vT2}"))
        o.append(op(f"v_mul_f32 v{vNMC}, s{sNC}, v{vT2}"))
        return o

    def expblk(S, first):
        ops = []
        for i in range(16):
            ops.append(op(f"v_fma_f32 v{S + i}, v{S + i}, s{sC}, v{vNMC}"))
            ops.append(op(f"v_exp_f32 v{S + i}, v{S + i}"))
            if i >= 1:
                j = i - 1
                tg = vT0 if j % 2 == 0 else vT1
                if first and j < 2:
                    ops.append(op(f"v_mov_b32 v{tg}, v{S + j}"))
                else:
                    ops.append(op(f"v_add_f32 v{tg}, v{tg}, v{S + j}"))
                if j % 2 == 1:
                    ops.append(op(f"v_cvt_pk_bf16_f32 v{S + j // 2}, v{S + j - 1}, v{S + j}"))
        ops.append(op(f"v_add_f32 v{vT1}, v{vT1}, v{S + 15}"))
        ops.append(op(f"v_cvt_pk_bf16_f32 v{S + 7}, v{S + 14}, v{S + 15}"))
        return ops

    def vread(ks):
        fb = VF + 16 * (ks % 2)
        for t in range(4):
            for j2 in range(2):
                lg.issue(("V", ks, t))
                P(f"ds_read_b64_tr_b16 {vr(fb + 4 * t + 2 * j2, 2)}, v{vV[t]} offset:{4096 * ks + 2048 * j2}")

    def pv_groups(S, kss, after=None):
        gs = []
        for ks in kss:
            for t in range(4):
                def g(ks=ks, t=t):
                    lg.wait(("V", ks, t))
                    fb = VF + 16 * (ks % 2)
                    pb = S + 16 * (ks // 2) + 4 * (ks % 2)
                    P(f"v_mfma_f32_32x32x16_bf16 {vr(16 * t, 16)}, {vr(fb + 4 * t, 4)}, {vr(pb, 4)}, {vr(16 * t, 16)}")
                    if t == 3 and ks + 2 < 4:
                        vread(ks + 2)
                gs.append(g)
        return gs

    for s in range(8):
        kread(0, s)
    merge(qk_groups(SA), [])
    for f in max_ops(SA):
        f()

    def body(cur, nxt, name):
        P.block(name)
        lg.tags = []; lg.done = 0
        P("s_barrier")
        stamp(8, sJ)
        P(f"""
    s_add_u32 s{sSlot}, s{sJ}, 1
    s_and_b32 s{sSlot}, s{sSlot}, 3
    s_lshl_b32 s{sSlot}, s{sSlot}, 14
    s_and_b32 s{sSlotV}, s{sJ}, 3
    s_lshl_b32 s{sSlotV}, s{sSlotV}, 14
    v_add_u32 v{vK[0]}, s{sSlot}, v{vKb}
""")
        for s in range(1, 8):
            P(f"v_xor_b32 v{vK[s]}, {s << 5}, v{vK[0]}")
        for s in range(8):
            kread(0, s)
        for t in range(4):
            P(f"v_add_u32 v{vV[t]}, s{sSlotV}, v{vVb[t]}")
        va = expblk(cur, True) + [op(f"v_mul_f32 v{i}, v{vAl}, v{i}") for i in range(64)]
        gs = qk_groups(nxt)
        g10, g13 = gs[10], gs[13]
        gs[10] = lambda: (g10(), vread(0))
        gs[13] = lambda: (g13(), vread(1))
        merge(gs, va, start=10)
        merge(pv_groups(cur, [0, 1]), expblk(cur + 16, False))
        tail = [op(f"v_add_f32 v{vT0}, v{vT0}, v{vT1}"), op(f"v_fma_f32 v{vLs}, v{vLs}, v{vAl}, v{vT0}")] + max_ops(nxt)
        merge(pv_groups(cur, [2, 3]), tail)
        P(f"s_add_u32 s{sJ}, s{sJ}, 1")

    P.block("k1_lbl")
    P("K1_LOOP:")
    body(SA, SB, "k1_loopA")
    body(SB, SA, "k1_loopB")
    P(f"""
    s_cmp_lt_u32 s{sJ}, 16
    s_cbranch_scc1 K1_LOOP
""")

    P.block("k1_epi")
    stamp(4)
    dstamp(3)
    P(f"""
    v_mov_b32 v{vT1}, v{vLs}
    v_permlane32_swap_b32 v{vLs}, v{vT1}
    v_add_f32 v{vLs}, v{vLs}, v{vT1}
    v_rcp_f32 v{vAl}, v{vLs}
    v_bfe_u32 v{vT0}, v{vL}, 4, 1
    v_lshlrev_b32 v{vT0}, 17, v{vT0}
    v_lshrrev_b32 v{vT1}, 5, v{vL}
    v_lshl_add_u32 v{vT0}, v{vT1}, 8, v{vT0}
    v_and_b32 v{vT1}, 15, v{vL}
    v_lshl_add_u32 v{vOo}, v{vT1}, 4, v{vT0}
    s_lshl_b32 s{sOo}, s{sB}, 3
    s_lshl_b32 s{sT}, s{sW}, 1
    s_add_u32 s{sOo}, s{sOo}, s{sT}
    s_lshl_b32 s{sOo}, s{sOo}, 17
    s_lshl_b32 s{sT}, s{sH}, 12
    s_add_u32 s{sOo}, s{sOo}, s{sT}
""")
    for i in range(64):
        P(f"v_mul_f32 v{i}, v{vAl}, v{i}")
    for t in range(4):
        for u in range(2):
            d = 64 + 4 * (2 * t + u)
            for j in range(4):
                a = 16 * t + 8 * u + 2 * j
                P(f"v_cvt_pk_bf16_f32 v{d + j}, v{a}, v{a + 1}")
            P(f"buffer_store_dwordx4 {vr(d, 4)}, v{vOo}, s[36:39], s{sOo} offen offset:{t * 1024 + u * 512}")
    if STAMP:
        P("s_waitcnt vmcnt(0)")
        stamp(5)
        P("s_memrealtime s[96:97]")
        P("s_waitcnt lgkmcnt(0)")
        for k, sr in ((0, 92), (6, 94), (7, 96)):
            P(f"v_mov_b32 v{200 + 2 * k}, s{sr}")
            P(f"v_mov_b32 v{201 + 2 * k}, s{sr + 1}")
            P(f"buffer_store_dwordx2 v[{200 + 2 * k}:{201 + 2 * k}], v254, s[36:39], s58 offen offset:{8 * k}")
    if DBG:
        P("s_waitcnt vmcnt(0)")
        dstamp(4)
        P(f"""
    s_memrealtime s[96:97]
    s_or_b32 s{sT}, s2, s{sW}
    s_cmp_lg_u32 s{sT}, 0
    s_cbranch_scc1 K1_END
    s_waitcnt lgkmcnt(0)
    s_mov_b32 s20, s16
    s_and_b32 s21, s17, 0xffff
    s_mov_b32 s22, 256
    s_mov_b32 s23, 0x00020000
    v_mov_b32 v254, 0
""")
        for k in range(5):
            P(f"s_sub_u32 s{sT}, s{60 + 2 * k}, s92")
            P(f"v_mov_b32 v{200 + k}, s{sT}")
            P(f"buffer_store_dword v{200 + k}, v254, s[20:23], 0 offen offset:{4 * k}")
        P(f"s_sub_u32 s{sT}, s96, s94")
        P(f"v_mov_b32 v210, s{sT}")
        P(f"buffer_store_dword v210, v254, s[20:23], 0 offen offset:20")
    P("s_endpgm")

    P.block("k1_loader")
    sLW, sM = 44, 45
    lvm = Cnt(P, "vmcnt", 63)
    vWg, vWw = 8, 9
    WST = 16
    P(f"""
K1_LOADER:
    s_sub_u32 s{sLW}, s{sW}, 4
    v_lshrrev_b32 v1, 4, v255
    v_and_b32 v2, 15, v255
    v_lshlrev_b32 v{vWg}, 13, v1
    v_lshl_add_u32 v{vWg}, v2, 4, v{vWg}
    s_lshl_b32 s{sWo}, s{sH}, 8
    s_lshl_b32 s{sT}, s{sLW}, 17
    s_add_u32 s{sWo}, s{sWo}, s{sT}
""")
    for c in range(10):
        for i in range(4):
            if "--now" in sys.argv:
                P(f"s_mov_b32 s{sT}, 0")
            else:
                P(f"s_add_u32 s{sT}, s{sWo}, {c * 524288 + i * 32768}")
            lvm.issue(("W", c))
            P(f"buffer_load_dwordx4 {vr(WST + 16 * c + 4 * i, 4)}, v{vWg}, s[24:27], s{sT} offen{G.XW}")
    if STAMP:
        P("s_memtime s[96:97]")
    P(f"""
    s_lshl_b32 s{sT}, s{sLW}, 12
    v_lshlrev_b32 v3, 8, v1
    v_add_u32 v3, s{sT}, v3
""")
    for i in range(4):
        P(f"""
    v_add_u32 v4, {4 * i}, v1
    v_xor_b32 v4, v4, v2
    v_lshl_add_u32 v{10 + i}, v4, 4, v3
""")
    P(f"""
    v_lshlrev_b32 v4, 2, v1
    v_xor_b32 v4, v4, v2
    v_lshl_add_u32 v14, v4, 4, v3
    v_add_u32 v{vWw}, {WBASE}, v14
    s_lshl_b32 s{sM}, s{sLW}, 12
""")

    def issueK(p):
        P(f"s_mov_b32 s{sT}, {p * 16384}")
        P(f"s_add_u32 m0, s{sM}, {(p % 4) * 16384}")
        for i in range(4):
            lvm.issue(("K", p), limit=False)
            P(f"buffer_load_dwordx4 v{10 + i}, s[28:31], s{sT} offen offset:{1024 * i}{nt} lds")

    def issueV(p):
        P(f"s_mov_b32 s{sT}, {p * 16384}")
        P(f"s_add_u32 m0, s{sM}, {VBASE + (p % 4) * 16384}")
        for i in range(4):
            lvm.issue(("V", p), limit=False)
            P(f"buffer_load_dwordx4 v14, s[32:35], s{sT} offen offset:{1024 * i}{nt} lds")

    LATE = "--latekv" in sys.argv
    if not LATE:
        issueK(0); issueK(1); issueV(0); issueK(2); issueV(1)
    for c in range(10):
        if STAMP and c == 0:
            P("s_memtime s[98:99]")
        lvm.wait(("W", c))
        if STAMP and c == 0:
            P("s_memtime s[100:101]")
        if STAMP and c == 9:
            P("s_memtime s[56:57]")
        for i in range(4):
            P(f"ds_write_b128 v{vWw}, {vr(WST + 16 * c + 4 * i, 4)} offset:{(c % 2) * 16384 + 1024 * i}")
        P("s_waitcnt lgkmcnt(0)")
        P("s_barrier")
        if c == 0 and not LATE:
            issueK(3); issueV(2)
        if c == 9 and not LATE:
            issueV(3)
        if c == 9 and LATE:
            issueK(0); issueK(1); issueV(0); issueK(2); issueV(1); issueK(3); issueV(2); issueV(3)
    lvm.wait(("K", 0))
    P("s_barrier")
    for j in range(16):
        if j + 1 <= 15:
            lvm.wait(("K", j + 1))
        lvm.wait(("V", j))
        if STAMP:
            P(f"s_memtime s[{60 + 2 * j}:{61 + 2 * j}]")
        P("s_barrier")
        if j + 4 <= 15:
            issueK(j + 4)
        if j >= 1 and j + 3 <= 15:
            issueV(j + 3)
    if STAMP:
        P("s_waitcnt lgkmcnt(0)")
        P("v_mov_b32 v221, 0")
        for j in range(17):
            P(f"v_mov_b32 v222, s{60 + 2 * j}")
            P(f"v_mov_b32 v223, s{61 + 2 * j}")
            P(f"buffer_store_dwordx2 v[222:223], v221, s[36:39], s58 offen offset:{(8 + j) * 8 if j < 16 else 0}")
        for k, sr in ((1, 96), (2, 98), (3, 100), (4, 56)):
            P(f"v_mov_b32 v222, s{sr}")
            P(f"v_mov_b32 v223, s{sr + 1}")
            P(f"buffer_store_dwordx2 v[222:223], v221, s[36:39], s58 offen offset:{k * 8}")
    P("""
K1_END:
    s_endpgm
""")
    P.fix_hazards(["k1_pro", "k1_setup", "k1_phA", "k1_lbl", "k1_loopA", "k1_loopB", "k1_lbl", "k1_loopA", "k1_loopB", "k1_epi"])
    P.fix_hazards(["k1_pro", "k1_loader"])
    return ["k1_pro", "k1_setup", "k1_phA", "k1_lbl", "k1_loopA", "k1_loopB", "k1_epi", "k1_loader"]


def main():
    out = sys.argv[1] if len(sys.argv) > 1 and not sys.argv[1].startswith("--") else f"cdna_kernels/{NAME}.s"
    ref = open(f"cdna_kernels/{NAME}.s.ref").read().split("\n")
    head = [l for l in ref if l.startswith(";") and "@launch" not in l and "Override" not in l and "grid=ceil" not in l]
    P = Prog()
    b1 = gen_k1(P, "" if "--nont" in sys.argv else " nt")
    b2 = gen_k2(P)
    txt = "\n".join(head) + "\n"
    txt += "; @launch kernel=attn_kernel grid=(256,1,1) block=(512,1,1) lds=163840\n"
    txt += "; @launch kernel=oproj_kernel grid=(256,1,1) block=(256,1,1) lds=163840\n"
    txt += '.amdgcn_target "amdgcn-amd-amdhsa--gfx950"\n.text\n'
    txt += ".globl attn_kernel\n.p2align 8\n.type attn_kernel,@function\n"
    txt += P.emit(b1)
    txt += ".globl oproj_kernel\n.p2align 8\n.type oproj_kernel,@function\n"
    txt += P.emit(b2)
    txt += '.section .rodata,"a"\n'
    for k in ("attn_kernel", "oproj_kernel"):
        txt += f""".p2align 6
.amdhsa_kernel {k}
  .amdhsa_next_free_vgpr 256
  .amdhsa_next_free_sgpr 102
  .amdhsa_accum_offset 256
  .amdhsa_group_segment_fixed_size 0
  .amdhsa_kernarg_size 64
  .amdhsa_user_sgpr_count 2
  .amdhsa_user_sgpr_kernarg_segment_ptr 1
  .amdhsa_system_sgpr_workgroup_id_x 1
.end_amdhsa_kernel
"""
    open(out, "w").write(txt)


if __name__ == "__main__":
    main()
```

```python
import sys, os
sys.path.insert(0, os.path.dirname(__file__))
from dsl import Prog

NAME = "standalone__mha_block_cached__near_ridge"
import math
SCALE_C = (128 ** -0.5) * math.log2(math.e)


def f32hex(x):
    import struct
    return "0x%08x" % struct.unpack("<I", struct.pack("<f", x))[0]


def vr(a, n):
    return f"v[{a}:{a + n - 1}]" if n > 1 else f"v{a}"


def interleave(mf, va):
    out = []
    n = len(mf)
    k = 0
    for i, m in enumerate(mf):
        out.append(m)
        tgt = (len(va) * (i + 1)) // n
        while k < tgt:
            out.append(va[k]); k += 1
    return out


WBASE = 131072
NT = done = None


STAMP = "--stamp" in sys.argv
def opt(name):
    for a in sys.argv:
        if a.startswith("--" + name + "="):
            return " " + a.split("=", 1)[1].replace("+", " ")
    return ""
K2A, K2B, OST, XW = opt("k2a"), opt("k2b"), opt("ost"), opt("xw")


def gen_k1(P, nt=""):
    sW, sH, sB, sBH, sJ, sSlot, sT, sXo, sWo, sOo, sC, sNC = 40, 41, 42, 43, 44, 45, 46, 47, 48, 49, 50, 51
    P.block("k1_pro")
    P(f"""
attn_kernel:
    s_cmp_ge_u32 s2, 256
    s_cbranch_scc1 K1_END
    s_load_dwordx8 s[4:11], s[0:1], 0
    s_load_dwordx4 s[16:19], s[0:1], 48
    v_lshrrev_b32 v1, 6, v0
    v_and_b32 v255, 63, v0
    v_readfirstlane_b32 s{sW}, v1
    s_and_b32 s{sH}, s2, 7
    s_lshl_b32 s{sH}, s{sH}, 2
    s_lshr_b32 s{sT}, s2, 3
    s_and_b32 s{sT}, s{sT}, 3
    s_add_u32 s{sH}, s{sH}, s{sT}
    s_lshr_b32 s{sB}, s2, 5
    s_lshl_b32 s{sBH}, s{sB}, 5
    s_add_u32 s{sBH}, s{sBH}, s{sH}
    s_waitcnt lgkmcnt(0)
    s_mov_b32 s20, s4
    s_and_b32 s21, s5, 0xffff
    s_mov_b32 s22, 1310720
    s_mov_b32 s23, 0x00020000
    s_mov_b32 s24, s10
    s_and_b32 s25, s11, 0xffff
    s_mov_b32 s26, 5242880
    s_mov_b32 s27, 0x00020000
    s_lshl_b32 s{sT}, s{sBH}, 18
    s_add_u32 s28, s6, s{sT}
    s_addc_u32 s29, s7, 0
    s_and_b32 s29, s29, 0xffff
    s_mov_b32 s30, 262144
    s_mov_b32 s31, 0x00020000
    s_add_u32 s32, s8, s{sT}
    s_addc_u32 s33, s9, 0
    s_and_b32 s33, s33, 0xffff
    s_mov_b32 s34, 262144
    s_mov_b32 s35, 0x00020000
    s_mov_b32 s36, s18
    s_and_b32 s37, s19, 0xffff
    s_mov_b32 s38, {33554432 if STAMP else 8388608}
    s_mov_b32 s39, 0x00020000
    s_lshl_b32 s58, s2, 11
    s_lshl_b32 s59, s{sW}, 8
    s_add_u32 s58, s58, s59
    s_add_u32 s58, s58, 16777216
    s_memtime s[92:93]
    s_memrealtime s[94:95]
    s_cmp_ge_u32 s{sW}, 4
    s_cbranch_scc1 K1_LOADER
""")

    def stamp(slot, sreg=None):
        if not STAMP:
            return False
        P("s_memtime s[60:61]")
        P("s_waitcnt lgkmcnt(0)")
        P("v_mov_b32 v222, s60")
        P("v_mov_b32 v223, s61")
        P("v_mov_b32 v221, 0")
        if sreg is None:
            P(f"buffer_store_dwordx2 v[222:223], v221, s[36:39], s58 offen offset:{slot * 8}")
        else:
            P(f"s_lshl_b32 s59, s{sreg}, 3")
            P(f"s_add_u32 s59, s59, s58")
            P(f"buffer_store_dwordx2 v[222:223], v221, s[36:39], s59 offen offset:{slot * 8}")
        return True

    vL = 255
    vX, vWg, vWw = 224, 225, 226
    vWr = [227, 228, 229, 230]
    vKb = 231
    vVb = [232, 233, 234, 235]
    vK = list(range(236, 244))
    vV = [244, 245, 246, 247]
    vM, vLs, vAl, vNMC, vT0, vT1, vT2 = 248, 249, 250, 251, 252, 253, 254
    vOo = 224
    t0, t1, t2, t3 = 208, 209, 210, 211

    P.block("k1_setup")
    P(f"""
    v_and_b32 v{t0}, 31, v{vL}
    v_lshrrev_b32 v{t1}, 5, v{vL}
    v_mul_u32_u24 v{vX}, 1280, v{t0}
    v_lshl_add_u32 v{vX}, v{t1}, 4, v{vX}
    s_lshl_b32 s{sXo}, s{sB}, 7
    s_lshl_b32 s{sT}, s{sW}, 5
    s_add_u32 s{sXo}, s{sXo}, s{sT}
    s_mul_i32 s{sXo}, s{sXo}, 1280
    v_lshrrev_b32 v{t2}, 4, v{vL}
    v_and_b32 v{t3}, 15, v{vL}
    v_lshlrev_b32 v{vWg}, 13, v{t2}
    v_lshl_add_u32 v{vWg}, v{t3}, 4, v{vWg}
    s_lshl_b32 s{sWo}, s{sH}, 8
    s_lshl_b32 s{sT}, s{sW}, 17
    s_add_u32 s{sWo}, s{sWo}, s{sT}
""")
    P(f"""
    v_lshlrev_b32 v{vT0}, 2, v{t2}
    v_xor_b32 v{vT0}, v{vT0}, v{t3}
    v_lshlrev_b32 v{vT0}, 4, v{vT0}
    v_lshl_add_u32 v{vT0}, v{t2}, 8, v{vT0}
    s_lshl_b32 s{sT}, s{sW}, 12
    s_add_u32 s{sT}, s{sT}, {WBASE}
    v_add_u32 v{vWw}, s{sT}, v{vT0}
""")
    P(f"""
    v_xor_b32 v{vT0}, v{t1}, v{t3}
    v_lshlrev_b32 v{vT0}, 4, v{vT0}
    v_lshl_add_u32 v{vKb}, v{t0}, 8, v{vT0}
""")
    P(f"""
    v_bfe_u32 v{vT0}, v{vL}, 4, 1
    v_lshlrev_b32 v{vT0}, 5, v{vT0}
    v_and_b32 v{vT1}, 1, v{vL}
    v_lshl_add_u32 v{vT0}, v{vT1}, 4, v{vT0}
    v_bfe_u32 v{vT1}, v{vL}, 1, 1
    v_lshl_add_u32 v{vT0}, v{vT1}, 3, v{vT0}
    v_bfe_u32 v{vT1}, v{vL}, 2, 2
    v_lshl_add_u32 v{vT0}, v{vT1}, 8, v{vT0}
""")
    for t in range(4):
        P(f"""
    v_xor_b32 v{vT2}, {t}, v{vT1}
    v_lshl_add_u32 v{vT2}, v{vT2}, 6, v{vT0}
    v_lshl_add_u32 v{vWr[t]}, v{t1}, 11, v{vT2}
    v_add_u32 v{vWr[t]}, {WBASE}, v{vWr[t]}
    v_lshl_add_u32 v{vVb[t]}, v{t1}, 10, v{vT2}
    v_add_u32 v{vVb[t]}, 16384, v{vVb[t]}
""")
    P(f"""
    s_mov_b32 s{sC}, {f32hex(SCALE_C)}
    s_mov_b32 s{sNC}, {f32hex(-SCALE_C)}
""")

    P.block("k1_phA")
    vm = []

    def issueW(c):
        base = 64 + 32 * (c % 4)
        for i in range(4):
            P(f"s_add_u32 s{sT}, s{sWo}, {c * 524288 + i * 32768}")
            P(f"buffer_load_dwordx4 {vr(base + 4 * i, 4)}, v{vWg}, s[24:27], s{sT} offen{XW}")
            vm.append(("W", c))

    def issueX(c):
        base = 64 + 32 * (c % 4) + 16
        for j in range(4):
            P(f"buffer_load_dwordx4 {vr(base + 4 * j, 4)}, v{vX}, s[20:23], s{sXo} offen offset:{128 * c + 32 * j}{XW}")
            vm.append(("X", c))

    def waitvm(tag):
        idx = max(i for i, t in enumerate(vm) if t == tag)
        P(f"s_waitcnt vmcnt({len(vm) - 1 - idx})")

    for c in range(4):
        issueW(c); issueX(c)
    for i in range(64):
        P(f"v_mov_b32 v{i}, 0")

    def trW(c, s):
        fb = 192 + 16 * (s % 2)
        for t in range(4):
            for j2 in range(2):
                P(f"ds_read_b64_tr_b16 {vr(fb + 4 * t + 2 * j2, 2)}, v{vWr[t]} offset:{(c % 2) * 16384 + 4096 * s + 1024 * j2}")

    for c in range(10):
        base = 64 + 32 * (c % 4)
        waitvm(("W", c))
        for i in range(4):
            P(f"ds_write_b128 v{vWw}, {vr(base + 4 * i, 4)} offset:{(c % 2) * 16384 + 1024 * i}")
        P("s_waitcnt lgkmcnt(0)")
        P("s_barrier")
        if c in (0, 5) and stamp(1 if c == 0 else 2):
            vm.append(("S", c))
        if c + 4 < 10:
            issueW(c + 4)
        trW(c, 0)
        waitvm(("X", c))
        for s in range(4):
            if s < 3:
                P("s_waitcnt lgkmcnt(4)")
                trW(c, s + 1)
                P("s_waitcnt lgkmcnt(8)")
            else:
                P("s_waitcnt lgkmcnt(0)")
            fb = 192 + 16 * (s % 2)
            for t in range(4):
                P(f"v_mfma_f32_32x32x16_bf16 {vr(16 * t, 16)}, {vr(fb + 4 * t, 4)}, {vr(base + 16 + 4 * s, 4)}, {vr(16 * t, 16)}")
        if c + 4 < 10:
            issueX(c + 4)

    for t in range(4):
        for u in range(2):
            for j in range(4):
                a = 16 * t + 8 * u + 2 * j
                P(f"v_cvt_pk_bf16_f32 v{64 + 4 * (2 * t + u) + j}, v{a}, v{a + 1}")
    for i in range(64):
        P(f"v_mov_b32 v{i}, 0")
    P(f"""
    v_mov_b32 v{vM}, 0xff800000
    v_mov_b32 v{vLs}, 0
    s_mov_b32 s{sJ}, 0
""")
    stamp(3)

    P.block("k1_loop")
    P("K1_LOOP:")
    P("s_barrier")
    stamp(8, sJ)
    P(f"""
    s_and_b32 s{sSlot}, s{sJ}, 3
    s_lshl_b32 s{sSlot}, s{sSlot}, 15
    v_add_u32 v{vK[0]}, s{sSlot}, v{vKb}
""")
    for s in range(1, 8):
        P(f"v_xor_b32 v{vK[s]}, {s << 5}, v{vK[0]}")
    for t in range(4):
        P(f"v_add_u32 v{vV[t]}, s{sSlot}, v{vVb[t]}")
    KF0, KF1 = 144, 176
    S0, S1 = 96, 112
    PP = 128
    for s in range(8):
        P(f"ds_read_b128 {vr(KF0 + 4 * s, 4)}, v{vK[s]}")
    for s in range(8):
        P(f"ds_read_b128 {vr(KF1 + 4 * s, 4)}, v{vK[s]} offset:8192")
        P("s_waitcnt lgkmcnt(8)")
        c = "0" if s == 0 else vr(S0, 16)
        P(f"v_mfma_f32_32x32x16_bf16 {vr(S0, 16)}, {vr(KF0 + 4 * s, 4)}, {vr(64 + 4 * s, 4)}, {c}")
    mx0 = []
    mx0.append(f"v_max3_f32 v{vT0}, v{S0}, v{S0 + 1}, v{S0 + 2}")
    mx0.append(f"v_max3_f32 v{vT1}, v{S0 + 3}, v{S0 + 4}, v{S0 + 5}")
    for k in range(5):
        tg = vT0 if k % 2 == 0 else vT1
        mx0.append(f"v_max3_f32 v{tg}, v{tg}, v{S0 + 6 + 2 * k}, v{S0 + 7 + 2 * k}")
    for s in range(8):
        P(f"s_waitcnt lgkmcnt({7 - s})")
        c = "0" if s == 0 else vr(S1, 16)
        P(f"v_mfma_f32_32x32x16_bf16 {vr(S1, 16)}, {vr(KF1 + 4 * s, 4)}, {vr(64 + 4 * s, 4)}, {c}")
        if s >= 3:
            k = s - 3
            for q in mx0[(k * 7) // 5:((k + 1) * 7) // 5]:
                P(q)

    def trV(ks, fb):
        for t in range(4):
            for j2 in range(2):
                P(f"ds_read_b64_tr_b16 {vr(fb + 4 * t + 2 * j2, 2)}, v{vV[t]} offset:{4096 * ks + 2048 * j2}")

    trV(0, 144)
    for k in range(8):
        tg = vT0 if k % 2 == 0 else vT1
        P(f"v_max3_f32 v{tg}, v{tg}, v{S1 + 2 * k}, v{S1 + 2 * k + 1}")
    P("s_waitcnt lgkmcnt(4)")
    trV(1, 160)
    P(f"""
    v_max3_f32 v{vT0}, v{vT0}, v{vT1}, v{vM}
    v_mov_b32 v{vT1}, v{vT0}
    v_permlane32_swap_b32 v{vT0}, v{vT1}
    v_max_f32 v{vT0}, v{vT0}, v{vT1}
    v_sub_f32 v{vT1}, v{vM}, v{vT0}
    v_mul_f32 v{vT1}, s{sC}, v{vT1}
    v_exp_f32 v{vAl}, v{vT1}
    v_mov_b32 v{vM}, v{vT0}
    v_mul_f32 v{vNMC}, s{sNC}, v{vT0}
""")

    def expblk(S, pbase, first):
        ops = []
        for i in range(16):
            ops.append(f"v_fma_f32 v{S + i}, v{S + i}, s{sC}, v{vNMC}")
            ops.append(f"v_exp_f32 v{S + i}, v{S + i}")
            if i >= 1:
                j = i - 1
                tg = vT0 if j % 2 == 0 else vT1
                if first and j < 2:
                    ops.append(f"v_mov_b32 v{tg}, v{S + j}")
                else:
                    ops.append(f"v_add_f32 v{tg}, v{tg}, v{S + j}")
                if j % 2 == 1:
                    ops.append(f"v_cvt_pk_bf16_f32 v{pbase + j // 2}, v{S + j - 1}, v{S + j}")
        ops.append(f"v_add_f32 v{vT1}, v{vT1}, v{S + 15}")
        ops.append(f"v_cvt_pk_bf16_f32 v{pbase + 7}, v{S + 14}, v{S + 15}")
        return ops

    for q in expblk(S0, PP, True):
        P(q)
    for i in range(64):
        P(f"v_mul_f32 v{i}, v{vAl}, v{i}")
    P("s_waitcnt lgkmcnt(0)")
    trV(2, 176)

    def pv(ks, fb):
        return [f"v_mfma_f32_32x32x16_bf16 {vr(16 * t, 16)}, {vr(fb + 4 * t, 4)}, {vr(PP + 4 * ks, 4)}, {vr(16 * t, 16)}"
                for t in range(4)]

    e1 = expblk(S1, PP + 8, False)
    seq = interleave(pv(0, 144) + pv(1, 160), e1)
    h = len(seq) // 2
    for q in seq[:h]:
        P(q)
    P("s_waitcnt lgkmcnt(4)")
    trV(3, 192)
    for q in seq[h:]:
        P(q)
    P("s_waitcnt lgkmcnt(0)")
    for q in pv(2, 176) + pv(3, 192):
        P(q)
    P(f"""
    v_add_f32 v{vT0}, v{vT0}, v{vT1}
    v_fma_f32 v{vLs}, v{vLs}, v{vAl}, v{vT0}
    s_add_u32 s{sJ}, s{sJ}, 1
    s_cmp_lt_u32 s{sJ}, 16
    s_cbranch_scc1 K1_LOOP
""")

    P.block("k1_epi")
    stamp(4)
    P(f"""
    v_mov_b32 v{vT1}, v{vLs}
    v_permlane32_swap_b32 v{vLs}, v{vT1}
    v_add_f32 v{vLs}, v{vLs}, v{vT1}
    v_rcp_f32 v{vAl}, v{vLs}
    v_bfe_u32 v{vT0}, v{vL}, 4, 1
    v_lshlrev_b32 v{vT0}, 17, v{vT0}
    v_lshrrev_b32 v{vT1}, 5, v{vL}
    v_lshl_add_u32 v{vT0}, v{vT1}, 8, v{vT0}
    v_and_b32 v{vT1}, 15, v{vL}
    v_lshl_add_u32 v{vOo}, v{vT1}, 4, v{vT0}
    s_lshl_b32 s{sOo}, s{sB}, 3
    s_lshl_b32 s{sT}, s{sW}, 1
    s_add_u32 s{sOo}, s{sOo}, s{sT}
    s_lshl_b32 s{sOo}, s{sOo}, 17
    s_lshl_b32 s{sT}, s{sH}, 12
    s_add_u32 s{sOo}, s{sOo}, s{sT}
""")
    for i in range(64):
        P(f"v_mul_f32 v{i}, v{vAl}, v{i}")
    for t in range(4):
        for u in range(2):
            d = 64 + 4 * (2 * t + u)
            for j in range(4):
                a = 16 * t + 8 * u + 2 * j
                P(f"v_cvt_pk_bf16_f32 v{d + j}, v{a}, v{a + 1}")
            P(f"buffer_store_dwordx4 {vr(d, 4)}, v{vOo}, s[36:39], s{sOo} offen offset:{t * 1024 + u * 512}{OST}")
    if STAMP:
        P("s_waitcnt vmcnt(0)")
        stamp(5)
        P("s_waitcnt lgkmcnt(0)")
        P("v_mov_b32 v222, s92")
        P("v_mov_b32 v223, s93")
        P("buffer_store_dwordx2 v[222:223], v221, s[36:39], s58 offen")
        P("s_memrealtime s[96:97]")
        P("s_waitcnt lgkmcnt(0)")
        P("v_mov_b32 v222, s94")
        P("v_mov_b32 v223, s95")
        P("buffer_store_dwordx2 v[222:223], v221, s[36:39], s58 offen offset:48")
        P("v_mov_b32 v224, s96")
        P("v_mov_b32 v225, s97")
        P("buffer_store_dwordx2 v[224:225], v221, s[36:39], s58 offen offset:56")
    P("s_endpgm")

    P.block("k1_loader")
    sLW, sM = 44, 45
    P(f"""
K1_LOADER:
    s_sub_u32 s{sLW}, s{sW}, 4
    v_lshrrev_b32 v1, 4, v255
    v_and_b32 v2, 15, v255
    s_lshl_b32 s{sT}, s{sLW}, 12
    v_lshlrev_b32 v3, 8, v1
    v_add_u32 v3, s{sT}, v3
""")
    for i in range(4):
        P(f"""
    v_add_u32 v4, {4 * i}, v1
    v_xor_b32 v4, v4, v2
    v_lshl_add_u32 v{10 + i}, v4, 4, v3
""")
    P(f"""
    v_lshlrev_b32 v4, 2, v1
    v_xor_b32 v4, v4, v2
    v_lshl_add_u32 v14, v4, 4, v3
    s_lshl_b32 s{sM}, s{sLW}, 12
""")

    def issue_pair(p):
        P(f"s_mov_b32 s{sT}, {p * 16384}")
        P(f"s_add_u32 m0, s{sM}, {(p % 4) * 32768}")
        for i in range(4):
            P(f"buffer_load_dwordx4 v{10 + i}, s[28:31], s{sT} offen offset:{1024 * i}{nt} lds")
        P(f"s_add_u32 m0, s{sM}, {(p % 4) * 32768 + 16384}")
        for i in range(4):
            P(f"buffer_load_dwordx4 v14, s[32:35], s{sT} offen offset:{1024 * i}{nt} lds")

    for p in range(4):
        issue_pair(p)
    for c in range(10):
        P("s_barrier")
    for j in range(16):
        out = min(15, max(3, j + 2)) - j
        P(f"s_waitcnt vmcnt({out * 8})")
        if STAMP:
            P(f"s_memtime s[{60 + 2 * j}:{61 + 2 * j}]")
        P("s_barrier")
        if 1 <= j <= 12:
            issue_pair(j + 3)
    if STAMP:
        P("s_waitcnt lgkmcnt(0)")
        P("v_mov_b32 v221, 0")
        for j in range(17):
            P(f"v_mov_b32 v222, s{60 + 2 * j}")
            P(f"v_mov_b32 v223, s{61 + 2 * j}")
            P(f"buffer_store_dwordx2 v[222:223], v221, s[36:39], s58 offen offset:{(8 + j) * 8 if j < 16 else 0}")
    P("""
K1_END:
    s_endpgm
""")
    P.fix_hazards(["k1_pro", "k1_setup", "k1_phA", "k1_loop", "k1_loop", "k1_epi"])
    P.fix_hazards(["k1_pro", "k1_loader"])
    return ["k1_pro", "k1_setup", "k1_phA", "k1_loop", "k1_epi", "k1_loader"]


def gen_k2(P):
    D = 8
    RB = D * 5120
    sW, sRT, sCT, sT, sA, sBo, sM, sT2 = 40, 41, 42, 43, 44, 45, 46, 47
    P.block("k2")
    P(f"""
oproj_kernel:
    s_cmp_ge_u32 s2, 256
    s_cbranch_scc1 K2_END
    s_load_dwordx4 s[12:15], s[0:1], 32
    s_load_dwordx4 s[16:19], s[0:1], 48
    {"s_memrealtime s[94:95]" if "--dbg" in sys.argv else ""}
    v_lshrrev_b32 v1, 6, v0
    v_and_b32 v255, 63, v0
    v_readfirstlane_b32 s{sW}, v1
    s_and_b32 s{sT}, s2, 7
    s_lshr_b32 s{sT2}, s2, 3
    {"s_lshr_b32 s43, s2, 5" if "--k2map1" in sys.argv else ""}
    {"s_and_b32 s47, s2, 31" if "--k2map1" in sys.argv else ""}
    s_lshr_b32 s{sRT}, s{sT}, 1
    s_lshl_b32 s{sRT}, s{sRT}, 3
    s_lshr_b32 s{sA}, s{sT2}, 2
    s_add_u32 s{sRT}, s{sRT}, s{sA}
    s_and_b32 s{sCT}, s{sT}, 1
    s_lshl_b32 s{sCT}, s{sCT}, 2
    s_and_b32 s{sA}, s{sT2}, 3
    s_add_u32 s{sCT}, s{sCT}, s{sA}
    s_waitcnt lgkmcnt(0)
    s_mov_b32 s20, s18
    s_and_b32 s21, s19, 0xffff
    s_mov_b32 s22, 8388608
    s_mov_b32 s23, 0x00020000
    s_mov_b32 s24, s12
    s_and_b32 s25, s13, 0xffff
    s_mov_b32 s26, 5242880
    s_mov_b32 s27, 0x00020000
    s_mov_b32 s28, s14
    s_and_b32 s29, s15, 0xffff
    s_mov_b32 s30, 1310720
    s_mov_b32 s31, 0x00020000
""")
    vA0, vA1 = 240, 241
    vB = [242, 243, 244, 245, 246]
    vTr = 247
    P(f"""
    s_lshl_b32 s{sA}, s{sRT}, 18
    s_lshl_b32 s{sT}, s{sW}, 15
    s_add_u32 s{sA}, s{sA}, s{sT}
    v_lshlrev_b32 v{vA0}, 4, v255
    v_add_u32 v{vA1}, 131072, v{vA0}
    s_mul_i32 s{sBo}, s{sW}, {1024 * 1280}
    s_mul_i32 s{sT}, s{sCT}, 160
    s_add_u32 s{sBo}, s{sBo}, s{sT}
    s_mul_i32 s{sM}, s{sW}, {RB}
""")
    for i in range(5):
        P(f"""
    v_add_u32 v1, {64 * i}, v255
    v_mul_u32_u24 v2, 205, v1
    v_lshrrev_b32 v2, 11, v2
    v_mul_u32_u24 v3, 10, v2
    v_sub_u32 v3, v1, v3
    v_mul_u32_u24 v2, 1280, v2
    v_lshl_add_u32 v2, v3, 4, v2
    v_subrev_u32 v{vB[i]}, {1024 * (i % 4)}, v2
""")
    P(f"""
    v_lshrrev_b32 v1, 4, v255
    v_lshlrev_b32 v1, 3, v1
    v_bfe_u32 v2, v255, 2, 2
    v_add_u32 v1, v1, v2
    v_mul_u32_u24 v1, 160, v1
    v_and_b32 v2, 3, v255
    v_lshl_add_u32 v1, v2, 3, v1
    v_add_u32 v{vTr}, s{sM}, v1
""")
    ACC = 0
    AF = 40
    BF = 104

    def issue(s):
        st = s % D
        P(f"s_add_u32 s{sT}, s{sA}, {s * 1024}")
        sa = "0" if "--k2noA" in sys.argv else f"s{sT}"
        P(f"buffer_load_dwordx4 {vr(AF + 8 * st, 4)}, v{vA0}, s[20:23], {sa} offen{K2A}")
        P(f"buffer_load_dwordx4 {vr(AF + 8 * st + 4, 4)}, v{vA1}, s[20:23], {sa} offen{K2A}")
        if "--k2noB" in sys.argv:
            P(f"s_mov_b32 s{sT2}, 0")
        else:
            P(f"s_add_u32 s{sT2}, s{sBo}, {s * 32 * 1280}")
        P(f"s_add_u32 m0, s{sM}, {st * 5120}")
        for i in range(4):
            P(f"buffer_load_dwordx4 v{vB[i]}, s[24:27], s{sT2} offen offset:{1024 * i}{K2B} lds")
        P(f"s_add_u32 m0, s{sM}, {st * 5120 + 4096}")
        P(f"buffer_load_dwordx4 v{vB[4]}, s[24:27], s{sT2} offen{K2B} lds")

    def trB(s):
        st = s % D
        fb = BF + 20 * (s % 2)
        for nb in range(5):
            for j2 in range(2):
                P(f"ds_read_b64_tr_b16 {vr(fb + 4 * nb + 2 * j2, 2)}, v{vTr} offset:{st * 5120 + 640 * j2 + 32 * nb}")

    NS = 32
    for s in range(D):
        issue(s)
    for i in range(40):
        P(f"v_mov_b32 v{ACC + i}, 0")
    issued = D
    P(f"s_waitcnt vmcnt({7 * (issued - 1)})")
    trB(0)
    for s in range(NS):
        if s + 1 < NS:
            P(f"s_waitcnt vmcnt({7 * (issued - (s + 2))})")
            P("s_waitcnt lgkmcnt(5)")
            trB(s + 1)
            P("s_waitcnt lgkmcnt(10)")
        else:
            P("s_waitcnt lgkmcnt(0)")
        st = s % D
        fb = BF + 20 * (s % 2)
        for rb in range(2):
            for nb in range(5):
                a = ACC + 4 * (rb * 5 + nb)
                P(f"v_mfma_f32_16x16x32_bf16 {vr(a, 4)}, {vr(fb + 4 * nb, 4)}, {vr(AF + 8 * st + 4 * rb, 4)}, {vr(a, 4)}")
        if s + D < NS:
            issue(s + D)
            issued += 1
    P(f"""
    v_lshlrev_b32 v{vA0}, 4, v255
    v_add_u32 v{vA0}, s{sM}, v{vA0}
""")
    for tl in range(10):
        P(f"ds_write_b128 v{vA0}, {vr(ACC + 4 * tl, 4)} offset:{tl * 1024}")
    P("s_waitcnt lgkmcnt(0)")
    P("s_barrier")
    P(f"s_mul_i32 s{sT}, s{sW}, 160")
    P(f"s_lshl_b32 s{sT2}, s{sRT}, 5")
    P(f"s_mul_i32 s{sT2}, s{sT2}, 1280")
    P(f"s_mul_i32 s{sA}, s{sCT}, 160")
    P(f"s_add_u32 s{sT2}, s{sT2}, s{sA}")
    for p in range(3):
        if p == 2:
            P("s_mov_b32 exec_hi, 0")
        q, a0, a1, tl, ln, rbv, o = 200, 201, 202, 203, 204, 205, 206 + p
        P(f"""
    v_add_u32 v{q}, s{sT}, v255
    v_add_u32 v{q}, {64 * p}, v{q}
    v_lshlrev_b32 v{a0}, 4, v{q}
    v_add_u32 v{a1}, {2 * RB}, v{a0}
    ds_read_b128 v[64:67], v{a0}
    ds_read_b128 v[68:71], v{a0} offset:{RB}
    ds_read_b128 v[72:75], v{a1}
    ds_read_b128 v[76:79], v{a1} offset:{RB}
    v_lshrrev_b32 v{tl}, 6, v{q}
    v_and_b32 v{ln}, 63, v{q}
    v_cmp_le_u32 vcc, 5, v{tl}
    v_cndmask_b32 v{rbv}, 0, 1, vcc
    v_mul_u32_u24 v{o}, 5, v{rbv}
    v_sub_u32 v{tl}, v{tl}, v{o}
    v_lshlrev_b32 v{rbv}, 4, v{rbv}
    v_and_b32 v{o}, 15, v{ln}
    v_add_u32 v{rbv}, v{rbv}, v{o}
    v_mul_u32_u24 v{rbv}, 1280, v{rbv}
    v_lshl_add_u32 v{rbv}, v{tl}, 5, v{rbv}
    v_lshrrev_b32 v{ln}, 4, v{ln}
    v_lshl_add_u32 v{o}, v{ln}, 3, v{rbv}
    s_waitcnt lgkmcnt(0)
""")
        for i in range(4):
            P(f"v_add_f32 v{64 + i}, v{64 + i}, v{68 + i}")
            P(f"v_add_f32 v{72 + i}, v{72 + i}, v{76 + i}")
        for i in range(4):
            P(f"v_add_f32 v{64 + i}, v{64 + i}, v{72 + i}")
        d = 80 + 2 * p
        P(f"v_cvt_pk_bf16_f32 v{d}, v64, v65")
        P(f"v_cvt_pk_bf16_f32 v{d + 1}, v66, v67")
        P(f"buffer_store_dwordx2 {vr(d, 2)}, v{o}, s[28:31], s{sT2} offen")
    if "--dbg" in sys.argv:
        P(f"""
    s_mov_b64 exec, -1
    s_waitcnt vmcnt(0)
    s_memrealtime s[96:97]
    s_or_b32 s{sT}, s2, s{sW}
    s_cmp_lg_u32 s{sT}, 0
    s_cbranch_scc1 K2_END
    s_add_u32 s20, s18, 16777216
    s_addc_u32 s21, s19, 0
    s_and_b32 s21, s21, 0xffff
    s_mov_b32 s22, 32
    s_mov_b32 s24, s16
    s_and_b32 s25, s17, 0xffff
    s_mov_b32 s26, 256
    v_lshlrev_b32 v1, 2, v255
    buffer_load_dword v2, v1, s[20:23], 0 offen
    s_waitcnt vmcnt(0) lgkmcnt(0)
    s_mov_b32 s26, 32
    buffer_store_dword v2, v1, s[24:27], 0 offen
    s_mov_b32 s26, 256
    v_mov_b32 v6, s94
    v_mov_b32 v7, s96
    v_mov_b32 v5, 0
    buffer_store_dwordx2 v[6:7], v5, s[24:27], 0 offen offset:32
""")
    P("""
K2_END:
    s_endpgm
""")
    P.fix_hazards(["k2"])
    return ["k2"]


def main():
    out = sys.argv[1] if len(sys.argv) > 1 else f"cdna_kernels/{NAME}.s"
    nt = " nt" if "--nt" in sys.argv else ""
    ref = open(f"cdna_kernels/{NAME}.s.ref").read().split("\n")
    head = [l for l in ref if l.startswith(";") and "@launch" not in l and "Override" not in l and "grid=ceil" not in l]
    P = Prog()
    b1 = gen_k1(P, nt)
    b2 = gen_k2(P)
    txt = "\n".join(head) + "\n"
    if "--k2only" not in sys.argv:
        txt += "; @launch kernel=attn_kernel grid=(256,1,1) block=(512,1,1) lds=163840\n"
    txt += "; @launch kernel=oproj_kernel grid=(256,1,1) block=(256,1,1) lds=163840\n"
    txt += '.amdgcn_target "amdgcn-amd-amdhsa--gfx950"\n.text\n'
    txt += ".globl attn_kernel\n.p2align 8\n.type attn_kernel,@function\n"
    txt += P.emit(b1)
    txt += ".globl oproj_kernel\n.p2align 8\n.type oproj_kernel,@function\n"
    txt += P.emit(b2)
    txt += '.section .rodata,"a"\n'
    for k in ("attn_kernel", "oproj_kernel"):
        txt += f""".p2align 6
.amdhsa_kernel {k}
  .amdhsa_next_free_vgpr 256
  .amdhsa_next_free_sgpr 102
  .amdhsa_accum_offset 256
  .amdhsa_group_segment_fixed_size 0
  .amdhsa_kernarg_size 64
  .amdhsa_user_sgpr_count 2
  .amdhsa_user_sgpr_kernarg_segment_ptr 1
  .amdhsa_system_sgpr_workgroup_id_x 1
.end_amdhsa_kernel
"""
    open(out, "w").write(txt)


if __name__ == "__main__":
    main()
```

```python
import sys, os, math, struct
sys.path.insert(0, os.path.dirname(__file__))
from dsl import Prog
import gen as G
from gen import vr, f32hex, SCALE_C, NAME, gen_k2

STAMP = "--stamp" in sys.argv
DBG = "--dbg" in sys.argv
WBASE = 114688
XBASE = 147456
XP = G.opt("xp")
VBASE = 65536


class Cnt:
    def __init__(self, P, name, maxv):
        self.P, self.name, self.maxv = P, name, maxv
        self.tags = []
        self.done = 0

    def issue(self, tag, limit=True):
        if limit and len(self.tags) + 1 - self.done > self.maxv:
            n = self.maxv - 1
            self.P(f"s_waitcnt {self.name}({n})")
            self.done = len(self.tags) - n
        self.tags.append(tag)

    def wait(self, tag):
        idx = max(i for i, t in enumerate(self.tags) if t == tag)
        if idx < self.done:
            return
        n = min(self.maxv, len(self.tags) - 1 - idx)
        self.P(f"s_waitcnt {self.name}({n})")
        self.done = max(self.done, len(self.tags) - n)

    def wait_all(self):
        self.P(f"s_waitcnt {self.name}(0)")
        self.done = len(self.tags)


def merge(groups, valu, start=0):
    k = 0
    for _ in range(min(start, len(valu))):
        valu[k](); k += 1
    n = len(groups)
    rem = len(valu) - k
    base = k
    for i, g in enumerate(groups):
        g()
        tgt = base + (rem * (i + 1)) // n
        while k < tgt:
            valu[k](); k += 1


def gen_k1(P, nt=" nt"):
    sW, sH, sB, sBH, sJ, sSlot, sT, sXo, sWo, sOo, sC, sNC, sSlotV = 40, 41, 42, 43, 44, 45, 46, 47, 48, 49, 50, 51, 52
    if "--map1" in sys.argv:
        MAP = f"""
    s_and_b32 s{sB}, s2, 7
    s_lshr_b32 s{sH}, s2, 3"""
    elif "--map2" in sys.argv:
        MAP = f"""
    s_and_b32 s{sT}, s2, 7
    s_lshr_b32 s{sB}, s{sT}, 1
    s_lshl_b32 s{sB}, s{sB}, 1
    s_lshr_b32 s{sH}, s2, 7
    s_add_u32 s{sB}, s{sB}, s{sH}
    s_and_b32 s{sT}, s{sT}, 1
    s_lshl_b32 s{sT}, s{sT}, 4
    s_lshr_b32 s{sH}, s2, 3
    s_and_b32 s{sH}, s{sH}, 15
    s_add_u32 s{sH}, s{sH}, s{sT}"""
    else:
        MAP = f"""
    s_and_b32 s{sH}, s2, 7
    s_lshl_b32 s{sH}, s{sH}, 2
    s_lshr_b32 s{sT}, s2, 3
    s_and_b32 s{sT}, s{sT}, 3
    s_add_u32 s{sH}, s{sH}, s{sT}
    s_lshr_b32 s{sB}, s2, 5"""
    P.block("k1_pro")
    P(f"""
attn_kernel:
    s_cmp_ge_u32 s2, 256
    s_cbranch_scc1 K1_END
    s_load_dwordx8 s[4:11], s[0:1], 0
    s_load_dwordx4 s[16:19], s[0:1], 48
    v_lshrrev_b32 v1, 6, v0
    v_and_b32 v255, 63, v0
    v_readfirstlane_b32 s{sW}, v1
{MAP}
    s_lshl_b32 s{sBH}, s{sB}, 5
    s_add_u32 s{sBH}, s{sBH}, s{sH}
    s_waitcnt lgkmcnt(0)
    s_mov_b32 s20, s4
    s_and_b32 s21, s5, 0xffff
    s_mov_b32 s22, 1310720
    s_mov_b32 s23, 0x00020000
    s_mov_b32 s24, s10
    s_and_b32 s25, s11, 0xffff
    s_mov_b32 s26, 5242880
    s_mov_b32 s27, 0x00020000
    s_lshl_b32 s{sT}, s{sBH}, 18
    s_add_u32 s28, s6, s{sT}
    s_addc_u32 s29, s7, 0
    s_and_b32 s29, s29, 0xffff
    s_mov_b32 s30, 262144
    s_mov_b32 s31, 0x00020000
    s_add_u32 s32, s8, s{sT}
    s_addc_u32 s33, s9, 0
    s_and_b32 s33, s33, 0xffff
    s_mov_b32 s34, 262144
    s_mov_b32 s35, 0x00020000
    s_mov_b32 s36, s18
    s_and_b32 s37, s19, 0xffff
    s_mov_b32 s38, {33554432 if STAMP else 8388608}
    s_mov_b32 s39, 0x00020000
""")
    if STAMP:
        P(f"""
    s_lshl_b32 s58, s2, 11
    s_lshl_b32 s59, s{sW}, 8
    s_add_u32 s58, s58, s59
    s_add_u32 s58, s58, 16777216
    s_memtime s[92:93]
    s_memrealtime s[94:95]
""")
    if DBG:
        P("""
    s_memtime s[92:93]
    s_memrealtime s[94:95]
""")
    P(f"""
    s_cmp_ge_u32 s{sW}, 4
    s_cbranch_scc1 K1_LOADER
""")

    def dstamp(k):
        if DBG:
            P(f"s_memtime s[{60 + 2 * k}:{61 + 2 * k}]")

    def stamp(slot, sreg=None):
        if not STAMP:
            return False
        P("s_memtime s[60:61]")
        P("s_waitcnt lgkmcnt(0)")
        P("v_mov_b32 v252, s60")
        P("v_mov_b32 v253, s61")
        P("v_mov_b32 v254, 0")
        if sreg is None:
            P(f"buffer_store_dwordx2 v[252:253], v254, s[36:39], s58 offen offset:{slot * 8}")
        else:
            P(f"s_lshl_b32 s59, s{sreg}, 3")
            P(f"s_add_u32 s59, s59, s58")
            P(f"buffer_store_dwordx2 v[252:253], v254, s[36:39], s59 offen offset:{slot * 8}")
        return True

    vL = 255
    vX = 224
    vWr = [225, 226, 227, 228]
    vKb = 229
    vVb = [230, 231, 232, 233]
    vK = list(range(234, 242))
    vV = [242, 243, 244, 245]
    vM, vLs, vAl, vNMC, vT0, vT1 = 246, 247, 248, 249, 250, 251
    vT2, vT3 = 252, 253
    vOo = 224
    t0, t1, t2, t3 = 208, 209, 210, 211

    P.block("k1_setup")
    XD = 6
    XST = 96
    XF = 64
    vXw = [234, 235]
    vXr = [236, 237, 238, 239]
    P(f"""
    v_and_b32 v{t0}, 31, v{vL}
    v_lshrrev_b32 v{t1}, 5, v{vL}
    v_lshrrev_b32 v{t2}, 3, v{vL}
    v_and_b32 v{t3}, 7, v{vL}
    v_mul_u32_u24 v{vX}, 1280, v{t2}
    v_lshl_add_u32 v{vX}, v{t3}, 4, v{vX}
    s_lshl_b32 s{sXo}, s{sB}, 7
    s_lshl_b32 s{sT}, s{sW}, 5
    s_add_u32 s{sXo}, s{sXo}, s{sT}
    s_mul_i32 s{sXo}, s{sXo}, 1280
    s_add_u32 s53, s{sXo}, 10240
    s_add_u32 s54, s{sXo}, 20480
    s_add_u32 s55, s{sXo}, 30720
""")
    vm = Cnt(P, "vmcnt", 63)
    lg = Cnt(P, "lgkmcnt", 15)
    sXi = [sXo, 53, 54, 55]

    def issueX(c):
        base = XST + 16 * (c % XD)
        for i in range(4):
            vm.issue(("X", c))
            P(f"buffer_load_dwordx4 {vr(base + 4 * i, 4)}, v{vX}, s[20:23], s{sXi[i]} offen offset:{128 * c}{XP}")

    for c in range(XD):
        issueX(c)
    P(f"""
    s_lshl_b32 s{sT}, s{sW}, 12
    s_add_u32 s{sT}, s{sT}, {XBASE}
    v_lshrrev_b32 v{vT0}, 4, v{vL}
    v_xor_b32 v{vT1}, v{vT0}, v{t3}
    v_lshlrev_b32 v{vT1}, 4, v{vT1}
    v_lshl_add_u32 v{vT1}, v{t2}, 7, v{vT1}
    v_add_u32 v{vXw[0]}, s{sT}, v{vT1}
    v_xor_b32 v{vXw[1]}, 64, v{vXw[0]}
    v_bfe_u32 v{vT0}, v{vL}, 1, 3
    v_xor_b32 v{vT0}, v{vT0}, v{t1}
    v_lshlrev_b32 v{vT0}, 4, v{vT0}
    v_lshl_add_u32 v{vT0}, v{t0}, 7, v{vT0}
    v_add_u32 v{vXr[0]}, s{sT}, v{vT0}
    v_xor_b32 v{vXr[1]}, 32, v{vXr[0]}
    v_xor_b32 v{vXr[2]}, 64, v{vXr[0]}
    v_xor_b32 v{vXr[3]}, 96, v{vXr[0]}
""")
    P(f"""
    v_and_b32 v{t3}, 15, v{vL}
    v_xor_b32 v{vT0}, v{t1}, v{t3}
    v_lshlrev_b32 v{vT0}, 4, v{vT0}
    v_lshl_add_u32 v{vKb}, v{t0}, 8, v{vT0}
    v_bfe_u32 v{vT0}, v{vL}, 4, 1
    v_lshlrev_b32 v{vT0}, 5, v{vT0}
    v_and_b32 v{vT1}, 1, v{vL}
    v_lshl_add_u32 v{vT0}, v{vT1}, 4, v{vT0}
    v_bfe_u32 v{vT1}, v{vL}, 1, 1
    v_lshl_add_u32 v{vT0}, v{vT1}, 3, v{vT0}
    v_bfe_u32 v{vT1}, v{vL}, 2, 2
    v_lshl_add_u32 v{vT0}, v{vT1}, 8, v{vT0}
""")
    for t in range(4):
        P(f"""
    v_xor_b32 v{vT2}, {t}, v{vT1}
    v_lshl_add_u32 v{vT2}, v{vT2}, 6, v{vT0}
    v_lshl_add_u32 v{vWr[t]}, v{t1}, 11, v{vT2}
    v_add_u32 v{vWr[t]}, {WBASE}, v{vWr[t]}
    v_lshl_add_u32 v{vVb[t]}, v{t1}, 10, v{vT2}
    v_add_u32 v{vVb[t]}, {VBASE}, v{vVb[t]}
""")
    P(f"""
    s_mov_b32 s{sC}, {f32hex(SCALE_C)}
    s_mov_b32 s{sNC}, {f32hex(-SCALE_C)}
""")
    for i in range(64):
        P(f"v_mov_b32 v{i}, 0")

    P.block("k1_phA")

    def trW(c, s):
        fb = 192 + 16 * (s % 2)
        for t in range(4):
            for j2 in range(2):
                lg.issue(("W", c, s))
                P(f"ds_read_b64_tr_b16 {vr(fb + 4 * t + 2 * j2, 2)}, v{vWr[t]} offset:{(c % 2) * 16384 + 4096 * s + 1024 * j2}")

    def xstage(c):
        base = XST + 16 * (c % XD)
        vm.wait(("X", c))
        for i in range(4):
            lg.issue(("XW", c))
            P(f"ds_write_b128 v{vXw[i % 2]}, {vr(base + 4 * i, 4)} offset:{1024 * i}")
        lg.wait(("XW", c))
        for s_ in range(4):
            lg.issue(("XR", c))
            P(f"ds_read_b128 {vr(XF + 16 * (c % 2) + 4 * s_, 4)}, v{vXr[s_]}")
        if c + XD < 10:
            issueX(c + XD)

    xstage(0)
    for c in range(10):
        P("s_barrier")
        if c in (0, 5):
            dstamp(0 if c == 0 else 1)
        if c in (0, 5) and stamp(1 if c == 0 else 2):
            vm.issue(("S", c))
            lg.done = len(lg.tags)
        trW(c, 0)
        lg.wait(("XR", c))
        for s in range(4):
            if s < 3:
                trW(c, s + 1)
            lg.wait(("W", c, s))
            fb = 192 + 16 * (s % 2)
            for t in range(4):
                P(f"v_mfma_f32_32x32x16_bf16 {vr(16 * t, 16)}, {vr(fb + 4 * t, 4)}, {vr(XF + 16 * (c % 2) + 4 * s, 4)}, {vr(16 * t, 16)}")
            if s == 1 and c + 1 < 10:
                xstage(c + 1)

    SA, SB, KF, VF = 96, 128, 160, 192
    for t in range(4):
        for u in range(2):
            for j in range(4):
                a = 16 * t + 8 * u + 2 * j
                P(f"v_cvt_pk_bf16_f32 v{64 + 4 * (2 * t + u) + j}, v{a}, v{a + 1}")
    for i in range(64):
        P(f"v_mov_b32 v{i}, 0")
    P(f"""
    v_mov_b32 v{vM}, 0xff800000
    v_mov_b32 v{vLs}, 0
    s_mov_b32 s{sJ}, 0
    v_mov_b32 v{vK[0]}, v{vKb}
""")
    for s in range(1, 8):
        P(f"v_xor_b32 v{vK[s]}, {s << 5}, v{vK[0]}")
    stamp(3)
    dstamp(2)
    P("s_barrier")

    def kread(blk, s):
        lg.issue(("K", blk, s))
        P(f"ds_read_b128 {vr(KF + 4 * s, 4)}, v{vK[s]}" + (" offset:8192" if blk else ""))

    def qk_groups(Sd):
        gs = []
        for blk in range(2):
            for s in range(8):
                def g(blk=blk, s=s):
                    lg.wait(("K", blk, s))
                    c = "0" if s == 0 else vr(Sd + 16 * blk, 16)
                    P(f"v_mfma_f32_32x32x16_bf16 {vr(Sd + 16 * blk, 16)}, {vr(KF + 4 * s, 4)}, {vr(64 + 4 * s, 4)}, {c}")
                    if blk == 0:
                        kread(1, s)
                gs.append(g)
        return gs

    def op(text):
        return lambda: P(text)

    def max_ops(S):
        o = []
        o.append(op(f"v_max3_f32 v{vT2}, v{S}, v{S + 1}, v{S + 2}"))
        o.append(op(f"v_max3_f32 v{vT3}, v{S + 3}, v{S + 4}, v{S + 5}"))
        for k in range(13):
            tg = vT2 if k % 2 == 0 else vT3
            o.append(op(f"v_max3_f32 v{tg}, v{tg}, v{S + 6 + 2 * k}, v{S + 7 + 2 * k}"))
        o.append(op(f"v_max3_f32 v{vT2}, v{vT2}, v{vT3}, v{vM}"))
        o.append(op(f"v_mov_b32 v{vT3}, v{vT2}"))
        o.append(op(f"v_permlane32_swap_b32 v{vT2}, v{vT3}"))
        o.append(op(f"v_max_f32 v{vT2}, v{vT2}, v{vT3}"))
        o.append(op(f"v_sub_f32 v{vT3}, v{vM}, v{vT2}"))
        o.append(op(f"v_mul_f32 v{vT3}, s{sC}, v{vT3}"))
        o.append(op(f"v_exp_f32 v{vAl}, v{vT3}"))
        o.append(op(f"v_mov_b32 v{vM}, v{vT2}"))
        o.append(op(f"v_mul_f32 v{vNMC}, s{sNC}, v{vT2}"))
        return o

    def expblk(S, first):
        ops = []
        for i in range(16):
            ops.append(op(f"v_fma_f32 v{S + i}, v{S + i}, s{sC}, v{vNMC}"))
            ops.append(op(f"v_exp_f32 v{S + i}, v{S + i}"))
            if i >= 1:
                j = i - 1
                tg = vT0 if j % 2 == 0 else vT1
                if first and j < 2:
                    ops.append(op(f"v_mov_b32 v{tg}, v{S + j}"))
                else:
                    ops.append(op(f"v_add_f32 v{tg}, v{tg}, v{S + j}"))
                if j % 2 == 1:
                    ops.append(op(f"v_cvt_pk_bf16_f32 v{S + j // 2}, v{S + j - 1}, v{S + j}"))
        ops.append(op(f"v_add_f32 v{vT1}, v{vT1}, v{S + 15}"))
        ops.append(op(f"v_cvt_pk_bf16_f32 v{S + 7}, v{S + 14}, v{S + 15}"))
        return ops

    def vread(ks):
        fb = VF + 16 * (ks % 2)
        for t in range(4):
            for j2 in range(2):
                lg.issue(("V", ks, t))
                P(f"ds_read_b64_tr_b16 {vr(fb + 4 * t + 2 * j2, 2)}, v{vV[t]} offset:{4096 * ks + 2048 * j2}")

    def pv_groups(S, kss, after=None):
        gs = []
        for ks in kss:
            for t in range(4):
                def g(ks=ks, t=t):
                    lg.wait(("V", ks, t))
                    fb = VF + 16 * (ks % 2)
                    pb = S + 16 * (ks // 2) + 4 * (ks % 2)
                    P(f"v_mfma_f32_32x32x16_bf16 {vr(16 * t, 16)}, {vr(fb + 4 * t, 4)}, {vr(pb, 4)}, {vr(16 * t, 16)}")
                    if t == 3 and ks + 2 < 4:
                        vread(ks + 2)
                gs.append(g)
        return gs

    for s in range(8):
        kread(0, s)
    merge(qk_groups(SA), [])
    for f in max_ops(SA):
        f()

    def body(cur, nxt, name):
        P.block(name)
        lg.tags = []; lg.done = 0
        P("s_barrier")
        stamp(8, sJ)
        P(f"""
    s_add_u32 s{sSlot}, s{sJ}, 1
    s_and_b32 s{sSlot}, s{sSlot}, 3
    s_lshl_b32 s{sSlot}, s{sSlot}, 14
    s_and_b32 s{sSlotV}, s{sJ}, 3
    s_lshl_b32 s{sSlotV}, s{sSlotV}, 14
    v_add_u32 v{vK[0]}, s{sSlot}, v{vKb}
""")
        for s in range(1, 8):
            P(f"v_xor_b32 v{vK[s]}, {s << 5}, v{vK[0]}")
        for s in range(8):
            kread(0, s)
        for t in range(4):
            P(f"v_add_u32 v{vV[t]}, s{sSlotV}, v{vVb[t]}")
        va = expblk(cur, True) + [op(f"v_mul_f32 v{i}, v{vAl}, v{i}") for i in range(64)]
        gs = qk_groups(nxt)
        g10, g13 = gs[10], gs[13]
        gs[10] = lambda: (g10(), vread(0))
        gs[13] = lambda: (g13(), vread(1))
        merge(gs, va, start=10)
        merge(pv_groups(cur, [0, 1]), expblk(cur + 16, False))
        tail = [op(f"v_add_f32 v{vT0}, v{vT0}, v{vT1}"), op(f"v_fma_f32 v{vLs}, v{vLs}, v{vAl}, v{vT0}")] + max_ops(nxt)
        merge(pv_groups(cur, [2, 3]), tail)
        P(f"s_add_u32 s{sJ}, s{sJ}, 1")

    P.block("k1_lbl")
    P("K1_LOOP:")
    body(SA, SB, "k1_loopA")
    body(SB, SA, "k1_loopB")
    P(f"""
    s_cmp_lt_u32 s{sJ}, 16
    s_cbranch_scc1 K1_LOOP
""")

    P.block("k1_epi")
    stamp(4)
    dstamp(3)
    P(f"""
    v_mov_b32 v{vT1}, v{vLs}
    v_permlane32_swap_b32 v{vLs}, v{vT1}
    v_add_f32 v{vLs}, v{vLs}, v{vT1}
    v_rcp_f32 v{vAl}, v{vLs}
    v_bfe_u32 v{vT0}, v{vL}, 4, 1
    v_lshlrev_b32 v{vT0}, 17, v{vT0}
    v_lshrrev_b32 v{vT1}, 5, v{vL}
    v_lshl_add_u32 v{vT0}, v{vT1}, 8, v{vT0}
    v_and_b32 v{vT1}, 15, v{vL}
    v_lshl_add_u32 v{vOo}, v{vT1}, 4, v{vT0}
    s_lshl_b32 s{sOo}, s{sB}, 3
    s_lshl_b32 s{sT}, s{sW}, 1
    s_add_u32 s{sOo}, s{sOo}, s{sT}
    s_lshl_b32 s{sOo}, s{sOo}, 17
    s_lshl_b32 s{sT}, s{sH}, 12
    s_add_u32 s{sOo}, s{sOo}, s{sT}
""")
    for i in range(64):
        P(f"v_mul_f32 v{i}, v{vAl}, v{i}")
    for t in range(4):
        for u in range(2):
            d = 64 + 4 * (2 * t + u)
            for j in range(4):
                a = 16 * t + 8 * u + 2 * j
                P(f"v_cvt_pk_bf16_f32 v{d + j}, v{a}, v{a + 1}")
            P(f"buffer_store_dwordx4 {vr(d, 4)}, v{vOo}, s[36:39], s{sOo} offen offset:{t * 1024 + u * 512}")
    if STAMP:
        P("s_waitcnt vmcnt(0)")
        stamp(5)
        P("s_memrealtime s[96:97]")
        P("s_waitcnt lgkmcnt(0)")
        for k, sr in ((0, 92), (6, 94), (7, 96)):
            P(f"v_mov_b32 v{200 + 2 * k}, s{sr}")
            P(f"v_mov_b32 v{201 + 2 * k}, s{sr + 1}")
            P(f"buffer_store_dwordx2 v[{200 + 2 * k}:{201 + 2 * k}], v254, s[36:39], s58 offen offset:{8 * k}")
    if DBG:
        P("s_waitcnt vmcnt(0)")
        dstamp(4)
        P(f"""
    s_memrealtime s[96:97]
    s_or_b32 s{sT}, s2, s{sW}
    s_cmp_lg_u32 s{sT}, 0
    s_cbranch_scc1 K1_END
    s_waitcnt lgkmcnt(0)
    s_add_u32 s20, s18, 16777216
    s_addc_u32 s21, s19, 0
    s_and_b32 s21, s21, 0xffff
    s_mov_b32 s22, 256
    s_mov_b32 s23, 0x00020000
    v_mov_b32 v254, 0
""")
        for k in range(5):
            P(f"s_sub_u32 s{sT}, s{60 + 2 * k}, s92")
            P(f"v_mov_b32 v{200 + k}, s{sT}")
            P(f"buffer_store_dword v{200 + k}, v254, s[20:23], 0 offen offset:{4 * k}")
        P(f"s_sub_u32 s{sT}, s96, s94")
        P(f"v_mov_b32 v210, s{sT}")
        P(f"buffer_store_dword v210, v254, s[20:23], 0 offen offset:20")
        P(f"v_mov_b32 v211, s94")
        P(f"buffer_store_dword v211, v254, s[20:23], 0 offen offset:24")
        P(f"v_mov_b32 v212, s96")
        P(f"buffer_store_dword v212, v254, s[20:23], 0 offen offset:28")
    P("s_endpgm")

    P.block("k1_loader")
    sLW, sM = 44, 45
    lvm = Cnt(P, "vmcnt", 63)
    vWg, vWw = 8, 9
    WST = 16
    P(f"""
K1_LOADER:
    s_sub_u32 s{sLW}, s{sW}, 4
    v_lshrrev_b32 v1, 4, v255
    v_and_b32 v2, 15, v255
    v_lshlrev_b32 v{vWg}, 13, v1
    v_lshl_add_u32 v{vWg}, v2, 4, v{vWg}
    s_lshl_b32 s{sWo}, s{sH}, 8
    s_lshl_b32 s{sT}, s{sLW}, 17
    s_add_u32 s{sWo}, s{sWo}, s{sT}
""")
    for c in range(10):
        for i in range(4):
            if "--now" in sys.argv:
                P(f"s_mov_b32 s{sT}, 0")
            else:
                P(f"s_add_u32 s{sT}, s{sWo}, {c * 524288 + i * 32768}")
            lvm.issue(("W", c))
            P(f"buffer_load_dwordx4 {vr(WST + 16 * c + 4 * i, 4)}, v{vWg}, s[24:27], s{sT} offen{G.XW}")
    if STAMP:
        P("s_memtime s[96:97]")
    P(f"""
    s_lshl_b32 s{sT}, s{sLW}, 12
    v_lshlrev_b32 v3, 8, v1
    v_add_u32 v3, s{sT}, v3
""")
    for i in range(4):
        P(f"""
    v_add_u32 v4, {4 * i}, v1
    v_xor_b32 v4, v4, v2
    v_lshl_add_u32 v{10 + i}, v4, 4, v3
""")
    P(f"""
    v_lshlrev_b32 v4, 2, v1
    v_xor_b32 v4, v4, v2
    v_lshl_add_u32 v14, v4, 4, v3
    v_add_u32 v{vWw}, {WBASE}, v14
    s_lshl_b32 s{sM}, s{sLW}, 12
""")

    def issueK(p):
        P(f"s_mov_b32 s{sT}, {p * 16384}")
        P(f"s_add_u32 m0, s{sM}, {(p % 4) * 16384}")
        for i in range(4):
            lvm.issue(("K", p), limit=False)
            P(f"buffer_load_dwordx4 v{10 + i}, s[28:31], s{sT} offen offset:{1024 * i}{nt} lds")

    def issueV(p):
        P(f"s_mov_b32 s{sT}, {p * 16384}")
        P(f"s_add_u32 m0, s{sM}, {VBASE + (p % 4) * 16384}")
        for i in range(4):
            lvm.issue(("V", p), limit=False)
            P(f"buffer_load_dwordx4 v14, s[32:35], s{sT} offen offset:{1024 * i}{nt} lds")

    LATE = "--latekv" in sys.argv
    if not LATE:
        issueK(0); issueK(1); issueV(0); issueK(2); issueV(1)
    for c in range(10):
        if STAMP and c == 0:
            P("s_memtime s[98:99]")
        lvm.wait(("W", c))
        if STAMP and c == 0:
            P("s_memtime s[100:101]")
        if STAMP and c == 9:
            P("s_memtime s[56:57]")
        for i in range(4):
            P(f"ds_write_b128 v{vWw}, {vr(WST + 16 * c + 4 * i, 4)} offset:{(c % 2) * 16384 + 1024 * i}")
        P("s_waitcnt lgkmcnt(0)")
        P("s_barrier")
        if c == 0 and not LATE:
            issueK(3); issueV(2)
        if c == 9 and not LATE:
            issueV(3)
        if c == 9 and LATE:
            issueK(0); issueK(1); issueV(0); issueK(2); issueV(1); issueK(3); issueV(2); issueV(3)
    lvm.wait(("K", 0))
    P("s_barrier")
    for j in range(16):
        if j + 1 <= 15:
            lvm.wait(("K", j + 1))
        lvm.wait(("V", j))
        if STAMP:
            P(f"s_memtime s[{60 + 2 * j}:{61 + 2 * j}]")
        P("s_barrier")
        if j + 4 <= 15:
            issueK(j + 4)
        if j >= 1 and j + 3 <= 15:
            issueV(j + 3)
    if STAMP:
        P("s_waitcnt lgkmcnt(0)")
        P("v_mov_b32 v221, 0")
        for j in range(17):
            P(f"v_mov_b32 v222, s{60 + 2 * j}")
            P(f"v_mov_b32 v223, s{61 + 2 * j}")
            P(f"buffer_store_dwordx2 v[222:223], v221, s[36:39], s58 offen offset:{(8 + j) * 8 if j < 16 else 0}")
        for k, sr in ((1, 96), (2, 98), (3, 100), (4, 56)):
            P(f"v_mov_b32 v222, s{sr}")
            P(f"v_mov_b32 v223, s{sr + 1}")
            P(f"buffer_store_dwordx2 v[222:223], v221, s[36:39], s58 offen offset:{k * 8}")
    P("""
K1_END:
    s_endpgm
""")
    P.fix_hazards(["k1_pro", "k1_setup", "k1_phA", "k1_lbl", "k1_loopA", "k1_loopB", "k1_lbl", "k1_loopA", "k1_loopB", "k1_epi"])
    P.fix_hazards(["k1_pro", "k1_loader"])
    return ["k1_pro", "k1_setup", "k1_phA", "k1_lbl", "k1_loopA", "k1_loopB", "k1_epi", "k1_loader"]


def main():
    out = sys.argv[1] if len(sys.argv) > 1 and not sys.argv[1].startswith("--") else f"cdna_kernels/{NAME}.s"
    ref = open(f"cdna_kernels/{NAME}.s.ref").read().split("\n")
    head = [l for l in ref if l.startswith(";") and "@launch" not in l and "Override" not in l and "grid=ceil" not in l]
    P = Prog()
    b1 = gen_k1(P, "" if "--nont" in sys.argv else " nt")
    b2 = gen_k2(P)
    txt = "\n".join(head) + "\n"
    txt += "; @launch kernel=attn_kernel grid=(256,1,1) block=(512,1,1) lds=163840\n"
    txt += "; @launch kernel=oproj_kernel grid=(256,1,1) block=(256,1,1) lds=163840\n"
    txt += '.amdgcn_target "amdgcn-amd-amdhsa--gfx950"\n.text\n'
    txt += ".globl attn_kernel\n.p2align 8\n.type attn_kernel,@function\n"
    txt += P.emit(b1)
    txt += ".globl oproj_kernel\n.p2align 8\n.type oproj_kernel,@function\n"
    txt += P.emit(b2)
    txt += '.section .rodata,"a"\n'
    for k in ("attn_kernel", "oproj_kernel"):
        txt += f""".p2align 6
.amdhsa_kernel {k}
  .amdhsa_next_free_vgpr 256
  .amdhsa_next_free_sgpr 102
  .amdhsa_accum_offset 256
  .amdhsa_group_segment_fixed_size 0
  .amdhsa_kernarg_size 64
  .amdhsa_user_sgpr_count 2
  .amdhsa_user_sgpr_kernarg_segment_ptr 1
  .amdhsa_system_sgpr_workgroup_id_x 1
.end_amdhsa_kernel
"""
    open(out, "w").write(txt)


if __name__ == "__main__":
    main()
```
